```python
import torch

def _softmax(x, axis=-1):
    return torch.softmax(x, dim=axis)
def _gelu(x):
    return torch.nn.functional.gelu(x, approximate="tanh")
def _silu(x):
    return torch.nn.functional.silu(x)
def _sigmoid(x):
    return torch.sigmoid(x)
def _layernorm(x, axis=-1, eps=1e-5):
    m = x.mean(dim=axis, keepdim=True)
    v = x.var(dim=axis, keepdim=True, unbiased=False)
    return (x - m) / torch.sqrt(v + eps)
def _scatter_add(tgt, idx, src, axis=0):
    return tgt.clone().index_add_(axis, idx, src)
def _segment_sum(src, seg, n):
    out = torch.zeros((n,) + src.shape[1:], dtype=src.dtype)
    return out.index_add_(0, seg, src)
def _pad(x, pw):
    flat = tuple(v for pair in reversed(pw) for v in pair)
    return torch.nn.functional.pad(x, flat)

kernel_name = 'parallel_sum__linear_attn_block__mixer_s_mlp__prompt'

def setup_inputs():

    _w = (lambda a: (lambda t: t.to(torch.bfloat16) if t.is_floating_point() else t)(torch.as_tensor(a)))
    def _A_setup():
        B, S, D = 1, 2048, 512
        return {
            "x": _w((lambda *s: torch.randn(*s, dtype=torch.bfloat16) * 0.05)(B, S, D)),
            "wqkv": _w((lambda *s: torch.randn(*s, dtype=torch.bfloat16) * 0.4)(D, 3 * D)),
            "wo": _w((lambda *s: torch.randn(*s, dtype=torch.bfloat16) * 0.4)(D, D)),
        }
    _A_in = _A_setup()

    def _B_setup():
        B, S, D, F = 1, 2048, 512, 1376
        return {
            "x":  _w((lambda *s: torch.randn(*s, dtype=torch.bfloat16) * 0.05)(B, S, D)),
            "w1": _w((lambda *s: torch.randn(*s, dtype=torch.bfloat16) * 3.2)(D, D) * (D ** -0.5)),
            "w2": _w((lambda *s: torch.randn(*s, dtype=torch.bfloat16) * 3.2)(D, D) * (D ** -0.5)),
            "w3": _w((lambda *s: torch.randn(*s, dtype=torch.bfloat16) * 3.2)(D, F) * (D ** -0.5)),
            "w4": _w((lambda *s: torch.randn(*s, dtype=torch.bfloat16) * 3.2)(F, D) * (F ** -0.5)),
        }
    _B_in = _B_setup()

    return {
        "A_x": _A_in["x"],
        "A_wqkv": _A_in["wqkv"],
        "A_wo": _A_in["wo"],
        "B_x": _B_in["x"],
        "B_w1": _B_in["w1"],
        "B_w2": _B_in["w2"],
        "B_w3": _B_in["w3"],
        "B_w4": _B_in["w4"],
    }

def reference(A_x, A_wqkv, A_wo, B_x, B_w1, B_w2, B_w3, B_w4):
    def _A_ref(x, wqkv, wo):
        B, S, D = x.shape
        H = 32; Dh = D // H
        qkv = (lambda x, *d: x.permute(*d))((x @ wqkv).reshape(B, S, 3, H, Dh), 2, 0, 3, 1, 4)
        q, k, v = qkv[0], qkv[1], qkv[2]
        phi = lambda t: torch.where(t > 0, t + 1, torch.exp(t)) + 1e-6
        pq, pk = phi(q), phi(k)
        kv = torch.einsum("bhsd,bhse->bhde", pk, v)
        z = torch.einsum("bhsd->bhd", pk)
        num = torch.einsum("bhqd,bhde->bhqe", pq, kv)
        den = torch.einsum("bhqd,bhd->bhq", pq, z)[..., None] + 1e-6
        o = num / den
        return (lambda x, *d: x.permute(*d))(o, 0, 2, 1, 3).reshape(B, S, D) @ wo

    def _B_ref(x, w1, w2, w3, w4):
        B, S, D = x.shape
        h = _gelu(_layernorm(x, axis=-1) @ w1)
        c = D // 4
        g0 = _pad(h[:, :, 0*c:1*c], ((0, 0), (1, 0), (0, 0)))[:, :S, :]
        g1 = _pad(h[:, :, 1*c:2*c], ((0, 0), (0, 1), (0, 0)))[:, 1:, :]
        g2 = _pad(h[:, :, 2*c:3*c], ((0, 0), (2, 0), (0, 0)))[:, :S, :]
        g3 = _pad(h[:, :, 3*c:   ], ((0, 0), (0, 2), (0, 0)))[:, 2:, :]
        hs = torch.concatenate([g0, g1, g2, g3], axis=-1) @ w2
        x1 = x + hs
        h2 = _gelu(_layernorm(x1, axis=-1) @ w3) @ w4
        return x1 + h2

    x = A_x
    xn = _layernorm(x, axis=-1)
    return x + _A_ref(xn, A_wqkv, A_wo) + _B_ref(xn, B_w1, B_w2, B_w3, B_w4)
```

```python
class Asm:
    def __init__(self):
        self.lines = []
        self.uid = 0
    def __call__(self, s):
        for l in s.split("\n"):
            l = l.strip()
            if l: self.lines.append("  " + l)
    def label(self, n):
        self.lines.append(n + ":")
    def raw(self, s):
        self.lines.append(s)
    def c(self, s):
        self.lines.append("  ; " + s)
    def new(self, p):
        self.uid += 1
        return "L_%s_%d" % (p, self.uid)
    def text(self):
        return "\n".join(self.lines) + "\n"

def v(n, c=1):
    return "v%d" % n if c == 1 else "v[%d:%d]" % (n, n + c - 1)
def s(n, c=1):
    return "s%d" % n if c == 1 else "s[%d:%d]" % (n, n + c - 1)

class Regs:
    def __init__(self, start=0, limit=256):
        self.n = start; self.limit = limit; self.hi = start
    def alloc(self, c=1, align=1):
        if c >= 2 and align < 2: align = 2
        self.n = (self.n + align - 1) // align * align
        r = self.n; self.n += c
        self.hi = max(self.hi, self.n)
        assert self.n <= self.limit, "out of VGPRs"
        return r
    def mark(self): return self.n
    def reset(self, m): self.n = m

import struct
def f2u(x):
    return struct.unpack("<I", struct.pack("<f", x))[0]
def fh(x):
    return "0x%08x" % f2u(x)
```

```python
import sys, math
sys.path.insert(0, "gen")
from asmlib import *

S, D, F = 2048, 512, 1376
FP = 1408
LDG = FP * 2
EPS = 1e-5
LOG2E = 1.4426950408889634
GC0 = 2.0 * math.sqrt(2.0 / math.pi)
KA_X, KA_WQKV, KA_WO, KA_BX, KA_W1, KA_W2, KA_W3, KA_W4, KA_OUT, KA_DBG, KA_WS = [8 * i for i in range(11)]
MB = 1 << 20
WS_PQ   = 0 * MB
WS_H    = 2 * MB
WS_KVP  = 4 * MB
KVP_ST  = 1088
WS_XST  = 5 * MB
WS_X1   = 6 * MB
WS_X1ST = 8 * MB
WS_O    = 9 * MB
WS_G    = 12 * MB
WS_BASE = 18 * MB
SZ_ACT  = S * D * 2

SLOT = 32768
TAB = 4 * SLOT
TAB_M, TAB_R, TAB_C = TAB, TAB + 512, TAB + 1024
LDS_BIG = TAB + 2048
LDS_SMALL = 4 * SLOT

S_WAVE = 3
SRD_X, SRD_W, SRD_A, SRD_B, SRD_C, SRD_D = 8, 12, 16, 20, 24, 28
S_RT, S_CT, S_WM, S_WN = 32, 33, 34, 35
S_P0 = 36
S_T0 = 60
S_M0B = 80

def srd(a, reg, plo, off, size):
    if off:
        a("s_add_u32 %s, %s, 0x%x" % (s(reg), s(plo), off))
        a("s_addc_u32 %s, %s, 0" % (s(reg + 1), s(plo + 1)))
    else:
        a("s_mov_b32 %s, %s" % (s(reg), s(plo)))
        a("s_mov_b32 %s, %s" % (s(reg + 1), s(plo + 1)))
    a("s_mov_b32 %s, 0x%x" % (s(reg + 2), size))
    a("s_mov_b32 %s, 0x00020000" % s(reg + 3))

def kernel_head(a, name, nwg):
    a.raw(".globl %s\n.p2align 8\n.type %s,@function\n%s:" % (name, name, name))
    a("s_cmp_ge_u32 s2, %d" % nwg)
    a("s_cbranch_scc1 %s_exit" % name)

def kernel_tail(a, name):
    a.label("%s_exit" % name)
    a("s_endpgm")

def descriptor(name, vgpr, sgpr=96):
    return """.p2align 6
.amdhsa_kernel %s
  .amdhsa_next_free_vgpr %d
  .amdhsa_next_free_sgpr %d
  .amdhsa_accum_offset %d
  .amdhsa_group_segment_fixed_size 0
  .amdhsa_kernarg_size 88
  .amdhsa_user_sgpr_count 2
  .amdhsa_user_sgpr_kernarg_segment_ptr 1
  .amdhsa_system_sgpr_workgroup_id_x 1
  .amdhsa_float_denorm_mode_32 3
.end_amdhsa_kernel
""" % (name, vgpr, sgpr, (vgpr + 3) // 4 * 4)

def wave_id(a):
    a("v_lshrrev_b32 v1, 6, v0")
    a("v_and_b32 v0, 63, v0")
    a("v_readfirstlane_b32 s3, v1")

def producer_loop(a, nst, vx, vw, xadv, wadv, extra=None, extra_loads=0, tail=None, pre_issue=None):
    ops = []
    def issue(st):
        if pre_issue: pre_issue(st)
        slot = (st % 4) * SLOT
        for j in range(4):
            a("s_add_u32 m0, %s, 0x%x" % (s(S_M0B), slot + j * 1024))
            a("s_nop 0")
            a("buffer_load_dwordx4 %s, %s, 0 offen lds" % (v(vx + j), s(SRD_X, 4)))
        for j in range(4):
            a("s_add_u32 m0, %s, 0x%x" % (s(S_M0B), slot + 16384 + j * 1024))
            a("s_nop 0")
            a("buffer_load_dwordx4 %s, %s, 0 offen lds" % (v(vw + j), s(SRD_W, 4)))
        ops.extend([st] * 8)
        if st + 1 < nst:
            xadv(st); wadv(st)
    for st in range(min(4, nst)):
        issue(st)
    if extra:
        extra(); ops.extend(["x"] * extra_loads)
    for st in range(nst):
        last = max(i for i, t in enumerate(ops) if t == st)
        n = len(ops) - 1 - last
        assert n <= 63, n
        a("s_waitcnt vmcnt(%d)" % n)
        a("s_barrier")
        if st >= 1 and st - 1 + 4 < nst:
            issue(st - 1 + 4)
    if tail: tail()

def mainloop(a, nst, reads, mfmas):
    a("s_barrier")
    for r in reads(0, 0, 0): a(r)
    nsteps = 2 * nst
    for n in range(nsteps):
        st, k = n // 2, n % 2
        a("s_waitcnt lgkmcnt(0)")
        if k == 1 and st + 1 < nst:
            a("s_barrier")
        rd = []
        if n + 1 < nsteps:
            rd = reads((n + 1) // 2, (n + 1) % 2, (n + 1) % 2)
        mf = mfmas(n % 2)
        i = 0
        per = max(1, -(-len(rd) // max(1, len(mf))))
        for m in mf:
            a(m)
            for _ in range(per):
                if i < len(rd):
                    a(rd[i]); i += 1
        while i < len(rd):
            a(rd[i]); i += 1

class Big:
    def __init__(self, R, gram, cs):
        self.vxa = R.alloc(8)
        self.vwa = R.alloc(8)
        self.xf = [R.alloc(16, 4), None]; self.wf = [R.alloc(16, 4), None]
        self.xf[1] = R.alloc(16, 4); self.wf[1] = R.alloc(16, 4)
        self.acc = R.alloc(64, 4)
        self.gram = R.alloc(8, 4) if gram else None
        self.rs = R.alloc(8, 4) if gram else None
        self.cs = R.alloc(8, 4) if cs else None
        self.ones = R.alloc(4, 4) if (gram or cs) else None
    def A(self, ltb, lf): return self.acc + (ltb * 4 + lf) * 4
    def setup(self, a, t0):
        vt, vq, vf, vtmp, vg, vk = t0, t0 + 1, t0 + 2, t0 + 3, t0 + 4, t0 + 5
        a("v_and_b32 %s, 15, v0" % v(vt))
        a("v_lshrrev_b32 %s, 4, v0" % v(vq))
        a("v_bfe_u32 %s, v0, 1, 3" % v(vf))
        a("s_lshl_b32 %s, %s, 13" % (s(S_T0), s(S_WM)))
        a("s_lshl_b32 %s, %s, 12" % (s(S_T0 + 1), s(S_WN)))
        a("s_xor_b32 %s, %s, 0x1000" % (s(S_T0 + 2), s(S_T0 + 1)))
        a("s_add_u32 %s, %s, %s" % (s(S_T0 + 1), s(S_T0 + 1), s(S_T0)))
        a("s_add_u32 %s, %s, %s" % (s(S_T0 + 2), s(S_T0 + 2), s(S_T0)))
        for kk in range(2):
            a("v_add_u32 %s, %d, %s" % (v(vtmp), 4 * kk, v(vq)))
            a("v_xor_b32 %s, %s, %s" % (v(vtmp), v(vtmp), v(vf)))
            a("v_lshlrev_b32 %s, 4, %s" % (v(vtmp), v(vtmp)))
            a("v_lshl_add_u32 %s, %s, 7, %s" % (v(vtmp), v(vt), v(vtmp)))
            for grp in range(2):
                r = self.vxa + kk * 4 + grp * 2
                a("v_add_u32 %s, %s, %s" % (v(r), s(S_T0 + 1 + grp), v(vtmp)))
                a("v_add_u32 %s, 0x10000, %s" % (v(r + 1), v(r)))
        a("v_bfe_u32 %s, v0, 2, 2" % v(vf))
        a("v_and_b32 %s, 1, %s" % (v(vg), v(vq)))
        a("v_lshl_or_b32 %s, %s, 2, %s" % (v(vg), v(vg), v(vf)))
        a("v_lshl_add_u32 %s, %s, 3, %s" % (v(vk), v(vq), v(vf)))
        a("v_lshlrev_b32 %s, 8, %s" % (v(vk), v(vk)))
        a("v_and_b32 %s, 3, v0" % v(vtmp))
        a("v_lshl_add_u32 %s, %s, 3, %s" % (v(vk), v(vtmp), v(vk)))
        a("v_add_u32 %s, 0x4000, %s" % (v(vk), v(vk)))
        a("s_lshl_b32 %s, %s, 2" % (s(S_T0), s(S_WN)))
        a("s_lshl_b32 %s, %s, 1" % (s(S_T0 + 1), s(S_WM)))
        for lf in range(4):
            a("s_xor_b32 %s, %s, %d" % (s(S_T0 + 2), s(S_T0 + 1), lf))
            a("s_add_u32 %s, %s, %s" % (s(S_T0 + 2), s(S_T0 + 2), s(S_T0)))
            a("v_xor_b32 %s, %s, %s" % (v(vtmp), s(S_T0 + 2), v(vg)))
            r = self.vwa + lf * 2
            a("v_lshl_add_u32 %s, %s, 5, %s" % (v(r), v(vtmp), v(vk)))
            a("v_add_u32 %s, 0x10000, %s" % (v(r + 1), v(r)))
    def init(self, a, zero_acc=True):
        if zero_acc:
            for i in range(64): a("v_mov_b32 %s, 0" % v(self.acc + i))
        if self.gram is not None:
            for i in range(8):
                a("v_mov_b32 %s, 0" % v(self.gram + i)); a("v_mov_b32 %s, 0" % v(self.rs + i))
        if self.cs is not None:
            for i in range(8): a("v_mov_b32 %s, 0" % v(self.cs + i))
        if self.ones is not None:
            for i in range(4): a("v_mov_b32 %s, 0x3f803f80" % v(self.ones + i))
    def reads(self, st, kk, set_):
        slot = st % 4; hi = slot >> 1; off = (slot & 1) * SLOT
        out = []
        xs = ["ds_read_b128 %s, %s offset:%d" % (v(self.xf[set_] + ltb * 4, 4), v(self.vxa + kk * 4 + (ltb >> 1) * 2 + hi), off + (ltb & 1) * 2048) for ltb in range(4)]
        wsr = []
        for lf in range(4):
            for hh in range(2):
                wsr.append("ds_read_b64_tr_b16 %s, %s offset:%d" % (v(self.wf[set_] + lf * 4 + hh * 2, 2), v(self.vwa + lf * 2 + hi), off + kk * 8192 + hh * 1024))
        for i in range(4):
            out.append(xs[i]); out += wsr[2 * i:2 * i + 2]
        return out
    def mfmas(self, set_, swapped):
        out = []
        xf, wf = self.xf[set_], self.wf[set_]
        def mm(d, A, B): return "v_mfma_f32_16x16x32_bf16 %s, %s, %s, %s" % (v(d, 4), v(A, 4), v(B, 4), v(d, 4))
        extra = []
        if self.gram is not None:
            for i in range(2):
                extra.append(mm(self.gram + 4 * i, xf + 4 * i, xf + 4 * i))
                extra.append(mm(self.rs + 4 * i, self.ones, xf + 4 * i))
        if self.cs is not None:
            for i in range(2):
                extra.append(mm(self.cs + 4 * i, self.ones, wf + 4 * i))
        for ltb in range(4):
            for lf in range(4):
                if swapped: out.append(mm(self.A(ltb, lf), wf + 4 * lf, xf + 4 * ltb))
                else:       out.append(mm(self.A(ltb, lf), xf + 4 * ltb, wf + 4 * lf))
        return out + extra

def big_producer_addr(a, vx, vw, t0, s_row0, s_rs, s_ca, s_ldw, s_colb, s_A, s_B):
    w = S_T0 + 9
    t1, t2, t3, t4 = t0, t0 + 1, t0 + 2, t0 + 3
    for jj in range(4):
        a("v_lshrrev_b32 %s, 4, v0" % v(t1))
        a("v_add_u32 %s, %d, %s" % (v(t1), 4 * jj, v(t1)))
        a("v_and_b32 %s, 7, %s" % (v(t1), v(t1)))
        a("v_and_b32 %s, 7, v0" % v(t2))
        a("v_xor_b32 %s, %s, %s" % (v(t1), v(t1), v(t2)))
        a("v_lshrrev_b32 %s, 1, %s" % (v(t2), v(t1)))
        a("v_mul_lo_u32 %s, %s, %s" % (v(t2), v(t2), s(s_ca)))
        a("v_and_b32 %s, 1, %s" % (v(t1), v(t1)))
        a("v_lshl_add_u32 %s, %s, 4, %s" % (v(t2), v(t1), v(t2)))
        a("s_lshl_b32 %s, %s, 5" % (s(S_T0), s(w)))
        a("s_add_u32 %s, %s, %s" % (s(S_T0), s(S_T0), s(s_row0)))
        a("s_add_u32 %s, %s, %d" % (s(S_T0), s(S_T0), 8 * jj))
        a("v_lshrrev_b32 %s, 3, v0" % v(t1))
        a("v_add_u32 %s, %s, %s" % (v(t1), s(S_T0), v(t1)))
        a("v_mul_lo_u32 %s, %s, %s" % (v(t1), v(t1), s(s_rs)))
        a("v_add_u32 %s, %s, %s" % (v(vx + jj), v(t1), v(t2)))
    for ii in range(4):
        a("v_lshrrev_b32 %s, 4, v0" % v(t1))
        a("v_or_b32 %s, %d, %s" % (v(t2), ((ii >> 1) & 1) << 2, v(t1)))
        a("v_bfe_u32 %s, v0, 1, 3" % v(t3))
        a("v_xor_b32 %s, %s, %s" % (v(t2), v(t2), v(t3)))
        a("v_lshrrev_b32 %s, 1, %s" % (v(t3), v(t2)))
        a("v_mul_lo_u32 %s, %s, %s" % (v(t3), v(t3), s(s_A)))
        a("v_and_b32 %s, 1, %s" % (v(t2), v(t2)))
        a("v_mul_lo_u32 %s, %s, %s" % (v(t2), v(t2), s(s_B)))
        a("v_add_u32 %s, %s, %s" % (v(t3), v(t3), v(t2)))
        a("v_and_b32 %s, 1, v0" % v(t2))
        a("v_lshl_add_u32 %s, %s, 4, %s" % (v(t3), v(t2), v(t3)))
        a("s_lshl_b32 %s, %s, 4" % (s(S_T0), s(w)))
        a("s_add_u32 %s, %s, %d" % (s(S_T0), s(S_T0), 4 * ii))
        a("v_add_u32 %s, %s, %s" % (v(t1), s(S_T0), v(t1)))
        a("v_mul_lo_u32 %s, %s, %s" % (v(t1), v(t1), s(s_ldw)))
        a("v_add_u32 %s, %s, %s" % (v(t1), v(t1), v(t3)))
        a("v_add_u32 %s, %s, %s" % (v(vw + ii), s(s_colb), v(t1)))

class Small:
    def __init__(self, R):
        self.vxa = R.alloc(8)
        self.vwa = R.alloc(4)
        self.xf = [R.alloc(16, 4), R.alloc(16, 4)]
        self.wf = [R.alloc(16, 4), R.alloc(16, 4)]
        self.acc = R.alloc(16, 4)
    def A(self, tb, f): return self.acc + (tb * 2 + f) * 4
    def setup(self, a, t0):
        vt, vq, vb, vtmp, vg, vk = t0, t0 + 1, t0 + 2, t0 + 3, t0 + 4, t0 + 5
        a("v_and_b32 %s, 15, v0" % v(vt))
        a("v_lshrrev_b32 %s, 4, v0" % v(vq))
        a("v_xor_b32 %s, %s, %s" % (v(vb), v(vq), v(vt)))
        a("v_lshlrev_b32 %s, 4, %s" % (v(vb), v(vb)))
        a("v_lshl_add_u32 %s, %s, 8, %s" % (v(vb), v(vt), v(vb)))
        a("s_lshl_b32 %s, %s, 13" % (s(S_T0), s(S_WM)))
        for kk in range(4):
            if kk: a("v_xor_b32 %s, %d, %s" % (v(vtmp), kk * 64, v(vb)))
            else:  a("v_mov_b32 %s, %s" % (v(vtmp), v(vb)))
            r = self.vxa + kk * 2
            a("v_add_u32 %s, %s, %s" % (v(r), s(S_T0), v(vtmp)))
            a("v_add_u32 %s, 0x10000, %s" % (v(r + 1), v(r)))
        a("v_bfe_u32 %s, v0, 2, 2" % v(vb))
        a("v_lshl_add_u32 %s, %s, 3, %s" % (v(vk), v(vq), v(vb)))
        a("v_lshlrev_b32 %s, 7, %s" % (v(vk), v(vk)))
        a("v_and_b32 %s, 3, v0" % v(vtmp))
        a("v_lshl_add_u32 %s, %s, 3, %s" % (v(vk), v(vtmp), v(vk)))
        a("v_add_u32 %s, 0x4000, %s" % (v(vk), v(vk)))
        a("v_lshrrev_b32 %s, 1, %s" % (v(vb), v(vb)))
        a("v_and_b32 %s, 1, %s" % (v(vg), v(vq)))
        a("v_lshl_or_b32 %s, %s, 1, %s" % (v(vg), v(vg), v(vb)))
        a("s_lshl_b32 %s, %s, 1" % (s(S_T0), s(S_WN)))
        for f in range(2):
            a("s_add_u32 %s, %s, %d" % (s(S_T0 + 1), s(S_T0), f))
            a("v_xor_b32 %s, %s, %s" % (v(vtmp), s(S_T0 + 1), v(vg)))
            r = self.vwa + f * 2
            a("v_lshl_add_u32 %s, %s, 5, %s" % (v(r), v(vtmp), v(vk)))
            a("v_add_u32 %s, 0x10000, %s" % (v(r + 1), v(r)))
    def reads(self, st, step, set_):
        slot = st % 4; hi = slot >> 1; off = (slot & 1) * SLOT
        out = []
        for k2 in range(2):
            kk = step * 2 + k2
            for i in range(2):
                out.append("ds_read_b128 %s, %s offset:%d" % (v(self.xf[set_] + k2 * 8 + i * 4, 4), v(self.vxa + kk * 2 + hi), off + i * 4096))
                for hh in range(2):
                    out.append("ds_read_b64_tr_b16 %s, %s offset:%d" % (v(self.wf[set_] + k2 * 8 + i * 4 + hh * 2, 2), v(self.vwa + i * 2 + hi), off + kk * 4096 + hh * 512))
        return out
    def mfmas(self, set_):
        out = []
        for k2 in range(2):
            for tb in range(2):
                for f in range(2):
                    d = self.A(tb, f)
                    out.append("v_mfma_f32_16x16x32_bf16 %s, %s, %s, %s" % (v(d, 4), v(self.wf[set_] + k2 * 8 + f * 4, 4), v(self.xf[set_] + k2 * 8 + tb * 4, 4), v(d, 4)))
        return out

def small_producer_addr(a, vx, vw, t0, s_row0, ldx, ldw, s_colb):
    w = S_T0 + 9
    t1, t2, t3 = t0, t0 + 1, t0 + 2
    for jj in range(4):
        a("v_lshrrev_b32 %s, 4, v0" % v(t1))
        a("v_add_u32 %s, %d, %s" % (v(t1), 4 * jj, v(t1)))
        a("v_and_b32 %s, 15, v0" % v(t2))
        a("v_xor_b32 %s, %s, %s" % (v(t2), v(t2), v(t1)))
        a("v_lshlrev_b32 %s, 4, %s" % (v(t2), v(t2)))
        a("s_lshl_b32 %s, %s, 4" % (s(S_T0), s(w)))
        a("s_add_u32 %s, %s, %s" % (s(S_T0), s(S_T0), s(s_row0)))
        a("v_add_u32 %s, %s, %s" % (v(t1), s(S_T0), v(t1)))
        a("s_mov_b32 %s, %d" % (s(S_T0), ldx))
        a("v_mul_lo_u32 %s, %s, %s" % (v(t1), v(t1), s(S_T0)))
        a("v_add_u32 %s, %s, %s" % (v(vx + jj), v(t1), v(t2)))
    for ii in range(4):
        a("v_bfe_u32 %s, v0, 4, 1" % v(t2))
        a("v_or_b32 %s, %d, %s" % (v(t2), (ii & 1) << 1, v(t2)))
        a("v_bfe_u32 %s, v0, 1, 2" % v(t3))
        a("v_xor_b32 %s, %s, %s" % (v(t2), v(t2), v(t3)))
        a("v_lshlrev_b32 %s, 5, %s" % (v(t2), v(t2)))
        a("v_and_b32 %s, 1, v0" % v(t3))
        a("v_lshl_add_u32 %s, %s, 4, %s" % (v(t2), v(t3), v(t2)))
        a("s_lshl_b32 %s, %s, 5" % (s(S_T0), s(w)))
        a("s_add_u32 %s, %s, %d" % (s(S_T0), s(S_T0), 8 * ii))
        a("v_lshrrev_b32 %s, 3, v0" % v(t1))
        a("v_add_u32 %s, %s, %s" % (v(t1), s(S_T0), v(t1)))
        a("s_mov_b32 %s, %d" % (s(S_T0), ldw))
        a("v_mul_lo_u32 %s, %s, %s" % (v(t1), v(t1), s(S_T0)))
        a("v_add_u32 %s, %s, %s" % (v(t1), v(t1), v(t2)))
        a("v_add_u32 %s, %s, %s" % (v(vw + ii), s(s_colb), v(t1)))

def adv(a, base, amount):
    def f(st):
        amt = amount(st) if callable(amount) else amount
        for j in range(4):
            if isinstance(amt, int):
                a("v_add_u32 %s, 0x%x, %s" % (v(base + j), amt & 0xffffffff, v(base + j)))
            else:
                a("v_add_u32 %s, %s, %s" % (v(base + j), amt, v(base + j)))
    return f

def tile_ids_big(a):
    a("s_and_b32 s4, s2, 7\ns_lshr_b32 s5, s2, 3")
    a("s_lshr_b32 s6, s4, 1\ns_lshl_b32 s6, s6, 2\ns_and_b32 s7, s5, 3\ns_add_u32 %s, s6, s7" % s(S_RT))
    a("s_and_b32 s6, s4, 1\ns_lshl_b32 s6, s6, 3\ns_lshr_b32 s7, s5, 2\ns_add_u32 %s, s6, s7" % s(S_CT))
def tile_ids_small(a):
    a("s_and_b32 s4, s2, 7\ns_lshr_b32 s5, s2, 3")
    a("s_lshl_b32 s6, s4, 2\ns_and_b32 s7, s5, 3\ns_add_u32 %s, s6, s7" % s(S_RT))
    a("s_lshr_b32 %s, s5, 2" % s(S_CT))
def wave_mn(a):
    a("s_lshr_b32 %s, s3, 1\ns_and_b32 %s, %s, 1\ns_and_b32 %s, s3, 1" % (s(S_WM), s(S_WM), s(S_WM), s(S_WN)))

DIAG = 0
for _q in range(4):
    DIAG |= 0xF << (20 * _q)
assert DIAG < (1 << 64)

def set_exec(a, mask):
    a("s_mov_b32 exec_lo, 0x%x" % (mask & 0xffffffff))
    a("s_mov_b32 exec_hi, 0x%x" % (mask >> 32))
def full_exec(a):
    a("s_mov_b64 exec, -1")

def mfma_drain(a):
    a("s_nop 7\ns_nop 3")

def stats_from_gram(a, B, T, store_xstat):
    sm = S_T0 + 2
    for i, pat in enumerate((0x22222222, 0x44444444, 0x88888888)):
        a("s_mov_b32 %s, 0x%x\ns_mov_b32 %s, 0x%x" % (s(sm + 2 * i), pat, s(sm + 2 * i + 1), pat))
    vtok, vm, vr_, vq_ = T, T + 2, T + 3, T + 4
    a("s_lshl_b32 s4, %s, 8\ns_lshl_b32 s5, %s, 7\ns_add_u32 s4, s4, s5\ns_add_u32 s4, s4, 0x%x" % (s(S_WM), s(S_WN), TAB))
    a("v_and_b32 %s, 15, v0" % v(vtok))
    a("v_lshl_add_u32 %s, %s, 2, s4" % (v(vtok + 1), v(vtok)))
    for i in range(2):
        pm = T + 2 + 4 * i
        g = B.gram + 4 * i
        a("v_cndmask_b32 %s, %s, %s, %s" % (v(pm + 2), v(g), v(g + 1), s(sm, 2)))
        a("v_cndmask_b32 %s, %s, %s, %s" % (v(pm + 2), v(pm + 2), v(g + 2), s(sm + 2, 2)))
        a("v_cndmask_b32 %s, %s, %s, %s" % (v(pm + 2), v(pm + 2), v(g + 3), s(sm + 4, 2)))
        a("v_mul_f32 %s, %s, %s" % (v(pm), fh(1.0 / D), v(B.rs + 4 * i)))
        a("v_mul_f32 %s, %s, %s" % (v(pm + 2), fh(1.0 / D), v(pm + 2)))
        a("v_fma_f32 %s, -%s, %s, %s" % (v(pm + 2), v(pm), v(pm), v(pm + 2)))
        a("v_add_f32 %s, %s, %s" % (v(pm + 2), fh(EPS), v(pm + 2)))
        a("v_rsq_f32 %s, %s" % (v(pm + 1), v(pm + 2)))
    a("s_nop 0")
    set_exec(a, DIAG)
    for i in range(2):
        pm = T + 2 + 4 * i
        a("ds_write_b32 %s, %s offset:%d" % (v(vtok + 1), v(pm), i * 64))
        a("ds_write_b32 %s, %s offset:%d" % (v(vtok + 1), v(pm + 1), 512 + i * 64))
    if store_xstat:
        lab = a.new("noxst")
        a("s_cmp_lg_u32 %s, 0\ns_cbranch_scc1 %s" % (s(S_CT), lab))
        a("s_lshl_b32 s4, %s, 7\ns_lshl_b32 s5, %s, 6\ns_add_u32 s4, s4, s5\ns_lshl_b32 s5, %s, 5\ns_add_u32 s4, s4, s5" % (s(S_RT), s(S_WM), s(S_WN)))
        a("v_add_u32 %s, s4, %s" % (v(T + 10), v(vtok)))
        a("v_lshlrev_b32 %s, 3, %s" % (v(T + 10), v(T + 10)))
        for i in range(2):
            a("buffer_store_dwordx2 %s, %s, %s, 0 offen offset:%d" % (v(T + 2 + 4 * i, 2), v(T + 10), s(SRD_C, 4), i * 128))
        a.label(lab)
    full_exec(a)

def colsum_to_table(a, B, T):
    a("s_lshl_b32 s4, %s, 8\ns_lshl_b32 s5, %s, 7\ns_add_u32 s4, s4, s5\ns_add_u32 s4, s4, 0x%x" % (s(S_WN), s(S_WM), TAB_C))
    a("v_and_b32 %s, 15, v0" % v(T))
    a("v_lshl_add_u32 %s, %s, 2, s4" % (v(T), v(T)))
    for i in range(2):
        a("ds_write_b32 %s, %s offset:%d" % (v(T), v(B.cs + 4 * i), i * 64))

def swapped_table_reads(a, T):
    vb0, vb1, vc0, vc1 = T, T + 1, T + 2, T + 3
    vm, vr_ = T + 4, T + 8
    cs = T + 12
    assert cs % 2 == 0
    a("s_lshl_b32 s4, %s, 8\ns_add_u32 s4, s4, 0x%x" % (s(S_WM), TAB_M))
    a("s_lshl_b32 s5, %s, 7\ns_xor_b32 s6, s5, 128\ns_add_u32 s5, s5, s4\ns_add_u32 s6, s6, s4" % s(S_WN))
    a("v_and_b32 %s, 15, v0" % v(vm))
    a("v_lshl_add_u32 %s, %s, 2, s5" % (v(vb0), v(vm)))
    a("v_lshl_add_u32 %s, %s, 2, s6" % (v(vb1), v(vm)))
    a("s_lshl_b32 s4, %s, 8\ns_add_u32 s4, s4, 0x%x" % (s(S_WN), TAB_C))
    a("s_lshl_b32 s5, %s, 7\ns_xor_b32 s6, s5, 128\ns_add_u32 s5, s5, s4\ns_add_u32 s6, s6, s4" % s(S_WM))
    a("v_lshrrev_b32 %s, 4, v0" % v(vm))
    a("v_lshl_add_u32 %s, %s, 4, s5" % (v(vc0), v(vm)))
    a("v_lshl_add_u32 %s, %s, 4, s6" % (v(vc1), v(vm)))
    for ltb in range(4):
        b = vb0 + (ltb >> 1)
        a("ds_read_b32 %s, %s offset:%d" % (v(vm + ltb), v(b), (ltb & 1) * 64))
        a("ds_read_b32 %s, %s offset:%d" % (v(vr_ + ltb), v(b), 512 + (ltb & 1) * 64))
    for lf in range(4):
        a("ds_read_b128 %s, %s offset:%d" % (v(cs + 4 * lf, 4), v(vc0 + (lf >> 1)), (lf & 1) * 64))
    a("s_waitcnt lgkmcnt(0)")
    return vm, vr_, cs

def big_token_offsets(a, dst, rs_shift=None, rs_sgpr=None, qshift=3):
    a("s_lshl_b32 s4, %s, 7\ns_lshl_b32 s5, %s, 6\ns_add_u32 s4, s4, s5" % (s(S_RT), s(S_WM)))
    a("s_lshl_b32 s5, %s, 1" % s(S_WN))
    a("v_and_b32 %s, 15, v0" % v(dst + 3))
    a("v_add_u32 %s, s4, %s" % (v(dst + 3), v(dst + 3)))
    for ltb in range(4):
        a("s_xor_b32 s6, s5, %d\ns_lshl_b32 s6, s6, 4" % ltb)
        if ltb < 3: a("v_add_u32 %s, s6, %s" % (v(dst + ltb), v(dst + 3)))
        else:       a("v_add_u32 %s, s6, %s" % (v(dst + 3), v(dst + 3)))
    for ltb in range(4):
        if rs_shift is not None:
            a("v_lshlrev_b32 %s, %d, %s" % (v(dst + ltb), rs_shift, v(dst + ltb)))
        else:
            a("v_mul_lo_u32 %s, %s, %s" % (v(dst + ltb), v(dst + ltb), s(rs_sgpr)))
    a("v_lshrrev_b32 v1, 4, v0")
    for ltb in range(4):
        a("v_lshl_add_u32 %s, v1, %d, %s" % (v(dst + ltb), qshift, v(dst + ltb)))

def feat_soffsets(a, sdst, sbase, fshift):
    a("s_lshl_b32 s5, %s, 1" % s(S_WM))
    for lf in range(4):
        a("s_xor_b32 s6, s5, %d\ns_lshl_b32 s6, s6, %d\ns_add_u32 %s, s6, %s" % (lf, fshift, s(sdst + lf), s(sbase)))

def gelu_epilogue(a, B, T, double_ln, srd_out, vtok, sF):
    vm, vr_, cs = swapped_table_reads(a, T)
    P = T + 28
    W = P + 16
    assert W + 12 <= T + 64
    for ltb in range(4):
        p0, p1 = P + 4 * ltb, P + 4 * ltb + 2
        R = vr_ + ltb
        if double_ln:
            a("v_mul_f32 %s, %s, %s" % (v(W), v(R), v(R)))
            a("v_mul_f32 %s, %s, %s" % (v(W), fh(-EPS), v(W)))
            a("v_add_f32 %s, %s, %s" % (v(W), fh(1.0 + EPS), v(W)))
            a("v_rsq_f32 %s, %s" % (v(W), v(W)))
            a("s_nop 0")
            a("v_mul_f32 %s, %s, %s" % (v(R), v(R), v(W)))
        a("v_sub_f32 %s, 0, %s" % (v(p0), v(vm + ltb)))
        a("v_mul_f32 %s, %s, %s" % (v(p0 + 1), fh(-GC0 * LOG2E), v(R)))
        a("v_mul_f32 %s, %s, %s" % (v(W), v(R), v(R)))
        a("v_mul_f32 %s, %s, %s" % (v(W), v(W), v(p0 + 1)))
        a("v_mul_f32 %s, %s, %s" % (v(p1), fh(0.044715), v(W)))
        a("v_rcp_f32 %s, %s" % (v(p1 + 1), v(R)))
    a("s_nop 0")
    for ltb in range(4):
        p0, p1 = P + 4 * ltb, P + 4 * ltb + 2
        for half in range(2):
            prs = [(B.A(ltb, 2 * half + i // 2) + 2 * (i % 2), cs + 4 * (2 * half + i // 2) + 2 * (i % 2), W + 2 * i) for i in range(4)]
            for (A, C, t) in prs: a("v_pk_fma_f32 %s, %s, %s, %s op_sel_hi:[1,0,1]" % (v(A, 2), v(C, 2), v(p0, 2), v(A, 2)))
            for (A, C, t) in prs: a("v_pk_mul_f32 %s, %s, %s" % (v(t, 2), v(A, 2), v(A, 2)))
            for (A, C, t) in prs: a("v_pk_fma_f32 %s, %s, %s, %s op_sel:[0,0,1] op_sel_hi:[1,0,1]" % (v(t, 2), v(t, 2), v(p1, 2), v(p0, 2)))
            for (A, C, t) in prs: a("v_pk_mul_f32 %s, %s, %s" % (v(t, 2), v(A, 2), v(t, 2)))
            for (A, C, t) in prs:
                a("v_exp_f32 %s, %s" % (v(t), v(t))); a("v_exp_f32 %s, %s" % (v(t + 1), v(t + 1)))
            for (A, C, t) in prs: a("v_pk_fma_f32 %s, %s, %s, %s op_sel:[0,1,1] op_sel_hi:[1,1,1]" % (v(t, 2), v(t, 2), v(p1, 2), v(p1, 2)))
            for (A, C, t) in prs:
                a("v_rcp_f32 %s, %s" % (v(t), v(t))); a("v_rcp_f32 %s, %s" % (v(t + 1), v(t + 1)))
            for (A, C, t) in prs: a("v_pk_mul_f32 %s, %s, %s" % (v(t, 2), v(A, 2), v(t, 2)))
            o = W + 8
            for i, (A, C, t) in enumerate(prs): a("v_cvt_pk_bf16_f32 %s, %s, %s" % (v(o + i), v(t), v(t + 1)))
            for i in range(2):
                a("buffer_store_dwordx2 %s, %s, %s, %s offen" % (v(o + 2 * i, 2), v(vtok + ltb), s(srd_out, 4), s(sF + 2 * half + i)))

def phi_pairs(a, prs, pR, pE):
    for (A, t) in prs: a("v_pk_mul_f32 %s, %s, %s op_sel:[0,1] op_sel_hi:[1,1]" % (v(t, 2), v(A, 2), v(pR, 2)))
    for (A, t) in prs: a("v_pk_fma_f32 %s, %s, %s, %s op_sel_hi:[1,0,0]" % (v(A, 2), v(A, 2), v(pR, 2), v(pE, 2)))
    for (A, t) in prs:
        a("v_exp_f32_e64 %s, %s clamp" % (v(t), v(t))); a("v_exp_f32_e64 %s, %s clamp" % (v(t + 1), v(t + 1)))
    for (A, t) in prs:
        a("v_max_f32 %s, %s, %s" % (v(A), v(pE), v(A))); a("v_max_f32 %s, %s, %s" % (v(A + 1), v(pE), v(A + 1)))
    for (A, t) in prs: a("v_pk_add_f32 %s, %s, %s" % (v(A, 2), v(A, 2), v(t, 2)))

def q_epilogue(a, B, T, srd_out, vtok, sF):
    vm, vr_, cs = swapped_table_reads(a, T)
    P = T + 28
    W = P + 16
    pE = W + 12
    assert pE + 2 <= T + 64
    a("v_mov_b32 %s, %s" % (v(pE), fh(1e-6)))
    for ltb in range(4):
        p0, p1 = P + 4 * ltb, P + 4 * ltb + 2
        a("v_sub_f32 %s, 0, %s" % (v(p0), v(vm + ltb)))
        a("v_mov_b32 %s, %s" % (v(p1), v(vr_ + ltb)))
        a("v_mul_f32 %s, %s, %s" % (v(p1 + 1), fh(LOG2E), v(vr_ + ltb)))
    for ltb in range(4):
        p0, p1 = P + 4 * ltb, P + 4 * ltb + 2
        for half in range(2):
            prs = [(B.A(ltb, 2 * half + i // 2) + 2 * (i % 2), cs + 4 * (2 * half + i // 2) + 2 * (i % 2), W + 2 * i) for i in range(4)]
            for (A, C, t) in prs: a("v_pk_fma_f32 %s, %s, %s, %s op_sel_hi:[1,0,1]" % (v(A, 2), v(C, 2), v(p0, 2), v(A, 2)))
            phi_pairs(a, [(A, t) for (A, C, t) in prs], p1, pE)
            o = W + 8
            for i, (A, C, t) in enumerate(prs): a("v_cvt_pk_bf16_f32 %s, %s, %s" % (v(o + i), v(A), v(A + 1)))
            for i in range(2):
                a("buffer_store_dwordx2 %s, %s, %s, %s offen" % (v(o + 2 * i, 2), v(vtok + ltb), s(srd_out, 4), s(sF + 2 * half + i)))

def kv_epilogue(a, B, T, X):
    vb0, vb1, vc0, vc1 = X, X + 1, X + 2, X + 3
    m4, r4 = T, T + 16
    cs = X + 4
    a("s_lshl_b32 s4, %s, 8\ns_add_u32 s4, s4, 0x%x" % (s(S_WM), TAB_M))
    a("s_lshl_b32 s5, %s, 7\ns_xor_b32 s6, s5, 128\ns_add_u32 s5, s5, s4\ns_add_u32 s6, s6, s4" % s(S_WN))
    a("v_lshrrev_b32 %s, 4, v0" % v(cs))
    a("v_lshl_add_u32 %s, %s, 4, s5" % (v(vb0), v(cs)))
    a("v_lshl_add_u32 %s, %s, 4, s6" % (v(vb1), v(cs)))
    a("s_lshl_b32 s4, %s, 8\ns_add_u32 s4, s4, 0x%x" % (s(S_WN), TAB_C))
    a("s_lshl_b32 s5, %s, 7\ns_xor_b32 s6, s5, 128\ns_add_u32 s5, s5, s4\ns_add_u32 s6, s6, s4" % s(S_WM))
    a("v_and_b32 %s, 15, v0" % v(cs))
    a("v_lshl_add_u32 %s, %s, 2, s5" % (v(vc0), v(cs)))
    a("v_lshl_add_u32 %s, %s, 2, s6" % (v(vc1), v(cs)))
    for ltb in range(4):
        b = vb0 + (ltb >> 1)
        a("ds_read_b128 %s, %s offset:%d" % (v(m4 + 4 * ltb, 4), v(b), (ltb & 1) * 64))
        a("ds_read_b128 %s, %s offset:%d" % (v(r4 + 4 * ltb, 4), v(b), 512 + (ltb & 1) * 64))
    for lf in range(4):
        a("ds_read_b32 %s, %s offset:%d" % (v(cs + lf), v(vc0 + (lf >> 1)), (lf & 1) * 64))
    W = T + 32
    KO = T + 40
    VO = T + 44
    pE = T + 48
    one4 = B.ones
    kvacc = X + 8
    a("v_mov_b32 %s, %s" % (v(pE), fh(1e-6)))
    a("v_mov_b32 %s, %s" % (v(pE + 1), fh(LOG2E)))
    for i in range(16): a("v_mov_b32 %s, 0" % v(kvacc + i))
    a("s_waitcnt lgkmcnt(0)")
    for lf in range(4): a("v_sub_f32 %s, 0, %s" % (v(cs + lf), v(cs + lf)))
    for hd in range(2):
        for pr in range(2):
            for isv in range(2):
                lf = 2 * hd + isv
                csp = cs + (lf & ~1); sel = lf & 1
                prs = []
                for b2 in range(2):
                    ltb = 2 * pr + b2
                    for i in range(2):
                        prs.append((B.A(ltb, lf) + 2 * i, m4 + 4 * ltb + 2 * i, r4 + 4 * ltb + 2 * i, W + 2 * (2 * b2 + i)))
                for (A, M, Rr, t) in prs: a("v_pk_fma_f32 %s, %s, %s, %s op_sel:[0,%d,0] op_sel_hi:[1,%d,1]" % (v(A, 2), v(M, 2), v(csp, 2), v(A, 2), sel, sel))
                for (A, M, Rr, t) in prs: a("v_pk_mul_f32 %s, %s, %s" % (v(A, 2), v(A, 2), v(Rr, 2)))
                if not isv:
                    for (A, M, Rr, t) in prs: a("v_pk_mul_f32 %s, %s, %s op_sel:[0,1] op_sel_hi:[1,1]" % (v(t, 2), v(A, 2), v(pE, 2)))
                    for (A, M, Rr, t) in prs: a("v_pk_add_f32 %s, %s, %s op_sel_hi:[1,0]" % (v(A, 2), v(A, 2), v(pE, 2)))
                    for (A, M, Rr, t) in prs:
                        a("v_exp_f32_e64 %s, %s clamp" % (v(t), v(t))); a("v_exp_f32_e64 %s, %s clamp" % (v(t + 1), v(t + 1)))
                    for (A, M, Rr, t) in prs:
                        a("v_max_f32 %s, %s, %s" % (v(A), v(pE), v(A))); a("v_max_f32 %s, %s, %s" % (v(A + 1), v(pE), v(A + 1)))
                    for (A, M, Rr, t) in prs: a("v_pk_add_f32 %s, %s, %s" % (v(A, 2), v(A, 2), v(t, 2)))
                dst = VO if isv else KO
                for i, (A, M, Rr, t) in enumerate(prs): a("v_cvt_pk_bf16_f32 %s, %s, %s" % (v(dst + i), v(A), v(A + 1)))
            a("s_nop 1")
            kva = kvacc + 8 * hd
            a("v_mfma_f32_16x16x32_bf16 %s, %s, %s, %s" % (v(kva, 4), v(KO, 4), v(VO, 4), v(kva, 4)))
            a("v_mfma_f32_16x16x32_bf16 %s, %s, %s, %s" % (v(kva + 4, 4), v(KO, 4), v(one4, 4), v(kva + 4, 4)))
            a("s_nop 3")
    mfma_drain(a)
    lab1, lab2 = a.new("kvw"), a.new("kvd")
    a("s_lshl_b32 s4, %s, 12" % s(S_WN))
    a("v_lshl_add_u32 %s, v0, 4, s4" % v(W))
    a("s_cmp_eq_u32 %s, 0\ns_cbranch_scc1 %s" % (s(S_WM), lab1))
    for i in range(4):
        a("ds_write_b128 %s, %s offset:%d" % (v(W), v(kvacc + 4 * i, 4), i * 1024))
    a("s_waitcnt lgkmcnt(0)")
    a("s_barrier")
    a("s_branch %s" % lab2)
    a.label(lab1)
    a("s_barrier")
    for i in range(4):
        a("ds_read_b128 %s, %s offset:%d" % (v(m4 + 4 * i, 4), v(W), i * 1024))
    a("s_waitcnt lgkmcnt(0)")
    for hd in range(2):
        for i in range(8):
            a("v_add_f32 %s, %s, %s" % (v(kvacc + 8 * hd + i), v(kvacc + 8 * hd + i), v(m4 + 8 * (hd ^ 1) + i)))
    a("s_sub_u32 s4, %s, 4\ns_lshl_b32 s4, s4, 2\ns_lshl_b32 s5, %s, 1\ns_add_u32 s4, s4, s5" % (s(S_CT), s(S_WN)))
    a("s_lshl_b32 s5, %s, 5\ns_add_u32 s4, s4, s5\ns_mul_i32 s4, s4, %d" % (s(S_RT), KVP_ST))
    a("v_and_b32 %s, 15, v0" % v(W))
    a("v_lshlrev_b32 %s, 6, %s" % (v(W), v(W)))
    a("v_lshrrev_b32 %s, 4, v0" % v(W + 1))
    a("v_lshl_add_u32 %s, %s, 4, %s" % (v(W), v(W + 1), v(W)))
    a("v_lshlrev_b32 %s, 4, %s" % (v(W + 1), v(W + 1)))
    for hd in range(2):
        a("s_add_u32 s5, s4, %d" % (hd * KVP_ST))
        a("buffer_store_dwordx4 %s, %s, %s, s5 offen" % (v(kvacc + 8 * hd, 4), v(W), s(SRD_B, 4)))
    set_exec(a, 0x0001000100010001)
    for hd in range(2):
        a("s_add_u32 s5, s4, %d" % (hd * KVP_ST + 1024))
        a("buffer_store_dwordx4 %s, %s, %s, s5 offen" % (v(kvacc + 8 * hd + 4, 4), v(W + 1), s(SRD_B, 4)))
    full_exec(a)
    a.label(lab2)

def gen_p1(a):
    name = "p1_kernel"
    kernel_head(a, name, 256)
    a("s_load_dwordx4 s[36:39], s[0:1], %d" % KA_X)
    a("s_load_dwordx2 s[40:41], s[0:1], %d" % KA_W1)
    a("s_load_dwordx2 s[42:43], s[0:1], %d" % KA_WS)
    wave_id(a)
    tile_ids_big(a)
    a("s_cmp_ge_u32 s3, 4\ns_cbranch_scc1 p1_prod")
    wave_mn(a)
    R = Regs(8)
    B = Big(R, True, True)
    vtok = R.alloc(4)
    X = R.alloc(28, 4)
    T = B.xf[0]
    B.setup(a, 2)
    B.init(a)
    a("s_waitcnt lgkmcnt(0)")
    srd(a, SRD_A, 42, WS_PQ, SZ_ACT)
    srd(a, SRD_B, 42, WS_KVP, 16 * 32 * KVP_ST)
    srd(a, SRD_C, 42, WS_XST, S * 8)
    srd(a, SRD_D, 42, WS_H, SZ_ACT)
    a("s_cmp_ge_u32 %s, 4\ns_cbranch_scc0 p1_sw" % s(S_CT))
    a("s_cmp_ge_u32 %s, 12\ns_cbranch_scc1 p1_sw" % s(S_CT))
    mainloop(a, 8, B.reads, lambda st: B.mfmas(st, False))
    mfma_drain(a)
    stats_from_gram(a, B, T, False)
    colsum_to_table(a, B, T + 12)
    a("s_waitcnt lgkmcnt(0)\ns_barrier")
    kv_epilogue(a, B, T, X)
    a("s_endpgm")
    a.label("p1_sw")
    mainloop(a, 8, B.reads, lambda st: B.mfmas(st, True))
    mfma_drain(a)
    stats_from_gram(a, B, T, True)
    colsum_to_table(a, B, T + 12)
    a("s_waitcnt lgkmcnt(0)\ns_barrier")
    sF, sB = 70, 74
    a("s_cmp_ge_u32 %s, 12\ns_cbranch_scc1 p1_h" % s(S_CT))
    big_token_offsets(a, vtok, rs_shift=5, qshift=3)
    a("s_lshl_b32 s4, %s, 3\ns_lshl_b32 s5, %s, 2\ns_add_u32 s4, s4, s5\ns_lshl_b32 %s, s4, 16" % (s(S_CT), s(S_WN), s(sB)))
    feat_soffsets(a, sF, sB, 16)
    q_epilogue(a, B, T, SRD_A, vtok, sF)
    a("s_endpgm")
    a.label("p1_h")
    big_token_offsets(a, vtok, rs_shift=10, qshift=3)
    a("s_sub_u32 s4, %s, 12\ns_lshl_b32 s4, s4, 8\ns_lshl_b32 s5, %s, 7\ns_add_u32 %s, s4, s5" % (s(S_CT), s(S_WN), s(sB)))
    feat_soffsets(a, sF, sB, 5)
    gelu_epilogue(a, B, T, True, SRD_D, vtok, sF)
    a("s_endpgm")
    a.label("p1_prod")
    w = S_T0 + 9
    a("s_sub_u32 %s, s3, 4" % s(w))
    a("s_lshl_b32 %s, %s, 12" % (s(S_M0B), s(w)))
    s_row0, s_rs, s_ca, s_ldw, s_colb, s_A, s_B = 44, 45, 46, 47, 48, 49, 50
    a("s_lshl_b32 %s, %s, 7" % (s(s_row0), s(S_RT)))
    a("s_mov_b32 %s, 1024\ns_mov_b32 %s, 32" % (s(s_rs), s(s_ca)))
    a("s_waitcnt lgkmcnt(0)")
    srd(a, SRD_X, 36, 0, SZ_ACT)
    srd(a, SRD_W, 38, 0, D * 3 * D * 2)
    a("s_mov_b32 %s, 3072\ns_mov_b32 %s, 64\ns_mov_b32 %s, 32\ns_lshl_b32 %s, %s, 8" % (s(s_ldw), s(s_A), s(s_B), s(s_colb), s(S_CT)))
    l1, l2 = a.new("p1k"), a.new("p1g")
    a("s_cmp_lt_u32 %s, 4\ns_cbranch_scc1 %s" % (s(S_CT), l2))
    a("s_cmp_lt_u32 %s, 12\ns_cbranch_scc1 %s" % (s(S_CT), l1))
    srd(a, SRD_W, 40, 0, D * D * 2)
    a("s_mov_b32 %s, 1024\ns_sub_u32 %s, %s, 12\ns_lshl_b32 %s, %s, 8" % (s(s_ldw), s(s_colb), s(S_CT), s(s_colb), s(s_colb)))
    a("s_branch %s" % l2)
    a.label(l1)
    a("s_mov_b32 %s, 32\ns_mov_b32 %s, 1024\ns_sub_u32 %s, %s, 4\ns_lshl_b32 %s, %s, 7\ns_add_u32 %s, %s, 1024" % (s(s_A), s(s_B), s(s_colb), s(S_CT), s(s_colb), s(s_colb), s(s_colb), s(s_colb)))
    a.label(l2)
    vx, vw = 8, 12
    big_producer_addr(a, vx, vw, 2, s_row0, s_rs, s_ca, s_ldw, s_colb, s_A, s_B)
    a("s_lshl_b32 s51, %s, 6" % s(s_ldw))
    producer_loop(a, 8, vx, vw, adv(a, vx, 128), adv(a, vw, "s51"))
    kernel_tail(a, name)
    return name, R.hi

def unpack_bf16(a, dlo, dhi, src):
    a("v_lshlrev_b32 %s, 16, %s" % (v(dlo), v(src)))
    a("v_and_b32 %s, 0xffff0000, %s" % (v(dhi), v(src)))

def xlane_sum_q(a, r, t):
    a("v_mov_b32 %s, %s" % (v(t), v(r)))
    a("s_nop 1")
    a("v_permlane32_swap_b32 %s, %s" % (v(t), v(r)))
    a("s_nop 1")
    a("v_add_f32 %s, %s, %s" % (v(r), v(r), v(t)))
    a("v_mov_b32 %s, %s" % (v(t), v(r)))
    a("s_nop 1")
    a("v_permlane16_swap_b32 %s, %s" % (v(t), v(r)))
    a("s_nop 1")
    a("v_add_f32 %s, %s, %s" % (v(r), v(r), v(t)))

def small_token_offsets(a, dst, rs, qshift):
    a("s_lshl_b32 s4, %s, 6\ns_lshl_b32 s5, %s, 5\ns_add_u32 s4, s4, s5" % (s(S_RT), s(S_WM)))
    a("v_and_b32 %s, 15, v0" % v(dst))
    a("v_add_u32 %s, s4, %s" % (v(dst), v(dst)))
    a("v_add_u32 %s, 16, %s" % (v(dst + 1), v(dst)))
    a("s_mov_b32 s5, %d" % rs)
    a("v_lshrrev_b32 v1, 4, v0")
    for tb in range(2):
        a("v_mul_lo_u32 %s, %s, s5" % (v(dst + tb), v(dst + tb)))
        a("v_lshl_add_u32 %s, v1, %d, %s" % (v(dst + tb), qshift, v(dst + tb)))

def gen_p2(a):
    name = "p2_kernel"
    kernel_head(a, name, 256)
    a("s_load_dwordx2 s[36:37], s[0:1], %d" % KA_X)
    a("s_load_dwordx2 s[38:39], s[0:1], %d" % KA_W2)
    a("s_load_dwordx2 s[42:43], s[0:1], %d" % KA_WS)
    wave_id(a)
    tile_ids_small(a)
    a("s_cmp_ge_u32 s3, 4\ns_cbranch_scc1 p2_prod")
    wave_mn(a)
    R = Regs(8)
    B = Small(R)
    vtok = R.alloc(2); vtk8 = R.alloc(2)
    L = R.alloc(16, 4)
    B.setup(a, 2)
    small_token_offsets(a, vtok, 1024, 3)
    sF = 70
    a("s_lshl_b32 s4, %s, 7\ns_lshl_b32 s5, %s, 6\ns_add_u32 %s, s4, s5\ns_add_u32 %s, %s, 32" % (s(S_CT), s(S_WN), s(sF), s(sF + 1), s(sF)))
    a("s_lshl_b32 s4, %s, 6\ns_lshl_b32 s5, %s, 5\ns_add_u32 s4, s4, s5" % (s(S_RT), s(S_WM)))
    a("v_and_b32 %s, 15, v0" % v(vtk8))
    a("v_add_u32 %s, s4, %s" % (v(vtk8), v(vtk8)))
    a("v_lshlrev_b32 %s, 3, %s" % (v(vtk8), v(vtk8)))
    a("v_add_u32 %s, 128, %s" % (v(vtk8 + 1), v(vtk8)))
    a("s_waitcnt lgkmcnt(0)")
    srd(a, SRD_A, 36, 0, SZ_ACT)
    srd(a, SRD_B, 42, WS_XST, S * 8)
    srd(a, SRD_C, 42, WS_X1, SZ_ACT)
    srd(a, SRD_D, 42, WS_X1ST, 16 * S * 8)
    for tb in range(2):
        a("buffer_load_dwordx2 %s, %s, %s, 0 offen" % (v(L + 8 + 2 * tb, 2), v(vtk8 + tb), s(SRD_B, 4)))
        for f in range(2):
            a("buffer_load_dwordx2 %s, %s, %s, %s offen" % (v(L + (tb * 2 + f) * 2, 2), v(vtok + tb), s(SRD_A, 4), s(sF + f)))
    a("s_waitcnt vmcnt(0)")
    for tb in range(2):
        pm = L + 8 + 2 * tb
        a("v_mul_f32 %s, %s, %s" % (v(pm), v(pm), v(pm + 1)))
        a("v_sub_f32 %s, 0, %s" % (v(pm), v(pm)))
        for f in range(2):
            A = B.A(tb, f); src = L + (tb * 2 + f) * 2
            unpack_bf16(a, A, A + 1, src); unpack_bf16(a, A + 2, A + 3, src + 1)
            for i in range(2):
                a("v_pk_fma_f32 %s, %s, %s, %s op_sel:[0,1,0] op_sel_hi:[1,1,0]" % (v(A + 2 * i, 2), v(A + 2 * i, 2), v(pm, 2), v(pm, 2)))
    a("s_nop 1")
    mainloop(a, 4, B.reads, B.mfmas)
    mfma_drain(a)
    T = B.xf[0]
    for tb in range(2):
        for f in range(2):
            A = B.A(tb, f); o = T + (tb * 2 + f) * 2
            a("v_cvt_pk_bf16_f32 %s, %s, %s" % (v(o), v(A), v(A + 1)))
            a("v_cvt_pk_bf16_f32 %s, %s, %s" % (v(o + 1), v(A + 2), v(A + 3)))
            a("buffer_store_dwordx2 %s, %s, %s, %s offen" % (v(o, 2), v(vtok + tb), s(SRD_C, 4), s(sF + f)))
    for tb in range(2):
        st = T + 8 + 2 * tb
        p, q_ = T + 12, T + 14
        A0, A1 = B.A(tb, 0), B.A(tb, 1)
        a("v_pk_add_f32 %s, %s, %s" % (v(p, 2), v(A0, 2), v(A0 + 2, 2)))
        a("v_pk_mul_f32 %s, %s, %s" % (v(q_, 2), v(A0, 2), v(A0, 2)))
        a("v_pk_add_f32 %s, %s, %s" % (v(p, 2), v(p, 2), v(A1, 2)))
        a("v_pk_fma_f32 %s, %s, %s, %s" % (v(q_, 2), v(A0 + 2, 2), v(A0 + 2, 2), v(q_, 2)))
        a("v_pk_add_f32 %s, %s, %s" % (v(p, 2), v(p, 2), v(A1 + 2, 2)))
        a("v_pk_fma_f32 %s, %s, %s, %s" % (v(q_, 2), v(A1, 2), v(A1, 2), v(q_, 2)))
        a("v_pk_fma_f32 %s, %s, %s, %s" % (v(q_, 2), v(A1 + 2, 2), v(A1 + 2, 2), v(q_, 2)))
        a("v_add_f32 %s, %s, %s" % (v(st), v(p), v(p + 1)))
        a("v_add_f32 %s, %s, %s" % (v(st + 1), v(q_), v(q_ + 1)))
        xlane_sum_q(a, st, T + 16); xlane_sum_q(a, st + 1, T + 17)
    a("s_lshl_b32 s4, %s, 1\ns_add_u32 s4, s4, %s\ns_lshl_b32 s4, s4, 14" % (s(S_CT), s(S_WN)))
    set_exec(a, 0xffff)
    for tb in range(2):
        a("buffer_store_dwordx2 %s, %s, %s, s4 offen" % (v(T + 8 + 2 * tb, 2), v(vtk8 + tb), s(SRD_D, 4)))
    full_exec(a)
    a("s_endpgm")
    a.label("p2_prod")
    w = S_T0 + 9
    a("s_sub_u32 %s, s3, 4" % s(w))
    a("s_lshl_b32 %s, %s, 12" % (s(S_M0B), s(w)))
    s_row0, s_colb = 44, 48
    a("s_lshl_b32 %s, %s, 6" % (s(s_row0), s(S_RT)))
    a("s_lshl_b32 %s, %s, 7" % (s(s_colb), s(S_CT)))
    vx, vw = 8, 12
    small_producer_addr(a, vx, vw, 2, s_row0, 1024, 1024, s_colb)
    for j in range(4): a("v_add_u32 %s, 0x%x, %s" % (v(vx + j), (-1024) & 0xffffffff, v(vx + j)))
    a("s_waitcnt lgkmcnt(0)")
    srd(a, SRD_X, 42, WS_H, SZ_ACT)
    srd(a, SRD_W, 38, 0, D * D * 2)
    srd(a, SRD_A, 42, WS_KVP, 16 * 32 * KVP_ST)
    srd(a, SRD_B, 42, WS_PQ, SZ_ACT)
    srd(a, SRD_C, 42, WS_O, SZ_ACT)
    pos = [-1024, 1024 + 256, -2048 + 512, 2048 + 768]
    xadv = adv(a, vx, lambda st: pos[st + 1] - pos[st])
    wadv = adv(a, vw, 128 * 1024)
    KV, Z, PQ = 16, 80, 144
    vkv, vz, vpq = 152, 153, 154
    def extra():
        a("s_and_b32 s52, s2, 31")
        a("s_mul_i32 s53, s52, %d" % KVP_ST)
        a("v_and_b32 v2, 15, v0\nv_lshrrev_b32 v3, 4, v0")
        a("v_lshlrev_b32 %s, 6, v2" % v(vkv))
        a("v_lshl_add_u32 %s, v3, 4, %s" % (v(vkv), v(vkv)))
        a("v_lshlrev_b32 %s, 4, v3" % v(vz))
        a("v_add_u32 %s, 1024, %s" % (v(vz), v(vz)))
        a("s_lshr_b32 s54, s2, 5\ns_lshl_b32 s54, s54, 8\ns_lshl_b32 s55, %s, 6\ns_add_u32 s54, s54, s55" % s(w))
        a("v_add_u32 v2, s54, v2\nv_lshlrev_b32 v2, 5, v2\nv_lshl_add_u32 v2, v3, 3, v2")
        a("s_lshl_b32 s55, s52, 16")
        a("v_add_u32 %s, s55, v2" % v(vpq))
        for tb in range(4):
            a("buffer_load_dwordx2 %s, %s, %s, 0 offen offset:%d" % (v(PQ + 2 * tb, 2), v(vpq), s(SRD_B, 4), tb * 512))
        for p in range(16):
            a("s_add_u32 s55, s53, %d" % (p * 32 * KVP_ST))
            a("buffer_load_dwordx4 %s, %s, %s, s55 offen" % (v(KV + 4 * p, 4), v(vkv), s(SRD_A, 4)))
            a("buffer_load_dwordx4 %s, %s, %s, s55 offen" % (v(Z + 4 * p, 4), v(vz), s(SRD_A, 4)))
    def tail():
        a("s_waitcnt vmcnt(0)")
        for base in (KV, Z):
            n = 16
            while n > 1:
                n //= 2
                for p in range(n):
                    for i in range(2):
                        a("v_pk_add_f32 %s, %s, %s" % (v(base + 4 * p + 2 * i, 2), v(base + 4 * p + 2 * i, 2), v(base + 4 * (p + n) + 2 * i, 2)))
        opk, opz = 160, 162
        a("v_cvt_pk_bf16_f32 %s, %s, %s" % (v(opk), v(KV), v(KV + 1)))
        a("v_cvt_pk_bf16_f32 %s, %s, %s" % (v(opk + 1), v(KV + 2), v(KV + 3)))
        a("v_cvt_pk_bf16_f32 %s, %s, %s" % (v(opz), v(Z), v(Z + 1)))
        a("v_cvt_pk_bf16_f32 %s, %s, %s" % (v(opz + 1), v(Z + 2), v(Z + 3)))
        a("s_nop 1")
        N, Dn = 164, 180
        for tb in range(4):
            a("v_mfma_f32_16x16x16_bf16 %s, %s, %s, 0" % (v(N + 4 * tb, 4), v(opk, 2), v(PQ + 2 * tb, 2)))
            a("v_mfma_f32_16x16x16_bf16 %s, %s, %s, 0" % (v(Dn + 4 * tb, 4), v(opz, 2), v(PQ + 2 * tb, 2)))
        mfma_drain(a)
        for tb in range(4):
            a("v_add_f32 %s, %s, %s" % (v(Dn + 4 * tb), fh(1e-6), v(Dn + 4 * tb)))
        for tb in range(4):
            a("v_rcp_f32 %s, %s" % (v(Dn + 4 * tb), v(Dn + 4 * tb)))
        a("s_nop 0")
        for tb in range(4):
            for i in range(2):
                a("v_pk_mul_f32 %s, %s, %s op_sel_hi:[1,0]" % (v(N + 4 * tb + 2 * i, 2), v(N + 4 * tb + 2 * i, 2), v(Dn + 4 * tb, 2)))
            a("v_cvt_pk_bf16_f32 %s, %s, %s" % (v(PQ + 2 * tb), v(N + 4 * tb), v(N + 4 * tb + 1)))
            a("v_cvt_pk_bf16_f32 %s, %s, %s" % (v(PQ + 2 * tb + 1), v(N + 4 * tb + 2), v(N + 4 * tb + 3)))
            a("buffer_store_dwordx2 %s, %s, %s, 0 offen offset:%d" % (v(PQ + 2 * tb, 2), v(vpq), s(SRD_C, 4), tb * 512))
    producer_loop(a, 4, vx, vw, xadv, wadv, extra=extra, extra_loads=36, tail=tail)
    kernel_tail(a, name)
    return name, max(R.hi, 200)

def gen_p3(a):
    name = "p3_kernel"
    kernel_head(a, name, 256)
    a("s_load_dwordx2 s[36:37], s[0:1], %d" % KA_X)
    a("s_load_dwordx2 s[38:39], s[0:1], %d" % KA_W3)
    a("s_load_dwordx2 s[40:41], s[0:1], %d" % KA_WO)
    a("s_load_dwordx2 s[42:43], s[0:1], %d" % KA_WS)
    wave_id(a)
    tile_ids_big(a)
    a("s_cmp_eq_u32 %s, 15\ns_cbranch_scc1 %s_exit" % (s(S_CT), name))
    a("s_cmp_ge_u32 s3, 4\ns_cbranch_scc1 p3_prod")
    wave_mn(a)
    R = Regs(8)
    B = Big(R, False, True)
    vtok = R.alloc(4)
    X = R.alloc(64, 4)
    T = B.xf[0]
    B.setup(a, 2)
    a("s_cmp_ge_u32 %s, 11\ns_cbranch_scc1 p3_wo" % s(S_CT))
    B.init(a)
    a("s_waitcnt lgkmcnt(0)")
    srd(a, SRD_A, 42, WS_X1ST, 16 * S * 8)
    srd(a, SRD_D, 42, WS_G, S * LDG)
    a("s_lshl_b32 s4, %s, 7\ns_lshl_b32 s5, %s, 6\ns_add_u32 s4, s4, s5" % (s(S_RT), s(S_WM)))
    a("v_add_u32 v2, s4, v0\nv_lshlrev_b32 v2, 3, v2")
    for p in range(16):
        a("s_mov_b32 s5, %d" % (p * 16384))
        a("buffer_load_dwordx2 %s, v2, %s, s5 offen" % (v(X + 2 * p, 2), s(SRD_A, 4)))
    a("s_waitcnt vmcnt(0)")
    n = 16
    while n > 1:
        n //= 2
        for p in range(n):
            a("v_pk_add_f32 %s, %s, %s" % (v(X + 2 * p, 2), v(X + 2 * p, 2), v(X + 2 * (p + n), 2)))
    a("v_mul_f32 %s, %s, %s" % (v(X), fh(1.0 / D), v(X)))
    a("v_mul_f32 %s, %s, %s" % (v(X + 1), fh(1.0 / D), v(X + 1)))
    a("v_fma_f32 %s, -%s, %s, %s" % (v(X + 1), v(X), v(X), v(X + 1)))
    a("v_add_f32 %s, %s, %s" % (v(X + 1), fh(EPS), v(X + 1)))
    a("v_rsq_f32 %s, %s" % (v(X + 1), v(X + 1)))
    a("s_lshl_b32 s4, %s, 8\ns_add_u32 s4, s4, 0x%x" % (s(S_WM), TAB_M))
    a("v_lshl_add_u32 v2, v0, 2, s4")
    a("ds_write_b32 v2, %s" % v(X))
    a("ds_write_b32 v2, %s offset:512" % v(X + 1))
    mainloop(a, 8, B.reads, lambda st: B.mfmas(st, True))
    mfma_drain(a)
    colsum_to_table(a, B, T + 12)
    a("s_waitcnt lgkmcnt(0)\ns_barrier")
    sF, sB = 70, 74
    a("s_mov_b32 s7, %d" % LDG)
    a("s_mov_b32 s75, %d" % LDG)
    big_token_offsets(a, vtok, rs_sgpr=75, qshift=3)
    a("s_lshl_b32 s4, %s, 8\ns_lshl_b32 s5, %s, 7\ns_add_u32 %s, s4, s5" % (s(S_CT), s(S_WN), s(sB)))
    feat_soffsets(a, sF, sB, 5)
    gelu_epilogue(a, B, T, False, SRD_D, vtok, sF)
    a("s_endpgm")
    a.label("p3_wo")
    a("s_waitcnt lgkmcnt(0)")
    srd(a, SRD_A, 36, 0, SZ_ACT)
    srd(a, SRD_B, 42, WS_X1, SZ_ACT)
    srd(a, SRD_C, 42, WS_BASE, S * D * 4)
    sF, sB = 70, 74
    big_token_offsets(a, vtok, rs_shift=10, qshift=3)
    a("s_sub_u32 s4, %s, 11\ns_lshl_b32 s4, s4, 8\ns_lshl_b32 s5, %s, 7\ns_add_u32 %s, s4, s5" % (s(S_CT), s(S_WN), s(sB)))
    feat_soffsets(a, sF, sB, 5)
    X2 = T
    for ltb in range(4):
        for lf in range(4):
            i = (ltb * 4 + lf) * 2
            a("buffer_load_dwordx2 %s, %s, %s, %s offen" % (v(X + i, 2), v(vtok + ltb), s(SRD_A, 4), s(sF + lf)))
            a("buffer_load_dwordx2 %s, %s, %s, %s offen" % (v(X2 + i, 2), v(vtok + ltb), s(SRD_B, 4), s(sF + lf)))
    for i in range(8): a("v_mov_b32 %s, 0" % v(B.cs + i))
    for i in range(4): a("v_mov_b32 %s, 0x3f803f80" % v(B.ones + i))
    a("s_waitcnt vmcnt(0)")
    tmp = X + 32
    for ltb in range(4):
        for lf in range(4):
            i = (ltb * 4 + lf) * 2; A = B.A(ltb, lf)
            unpack_bf16(a, A, A + 1, X + i); unpack_bf16(a, A + 2, A + 3, X + i + 1)
            unpack_bf16(a, tmp, tmp + 1, X2 + i); unpack_bf16(a, tmp + 2, tmp + 3, X2 + i + 1)
            a("v_pk_add_f32 %s, %s, %s" % (v(A, 2), v(A, 2), v(tmp, 2)))
            a("v_pk_add_f32 %s, %s, %s" % (v(A + 2, 2), v(A + 2, 2), v(tmp + 2, 2)))
    a("s_nop 1")
    cs_save = B.cs; B.cs = None
    mainloop(a, 8, B.reads, lambda st: B.mfmas(st, True))
    B.cs = cs_save
    mfma_drain(a)
    big_token_offsets(a, vtok, rs_shift=11, qshift=4)
    a("s_lshl_b32 %s, %s, 1" % (s(sB), s(sB)))
    feat_soffsets(a, sF, sB, 6)
    for ltb in range(4):
        for lf in range(4):
            a("buffer_store_dwordx4 %s, %s, %s, %s offen" % (v(B.A(ltb, lf), 4), v(vtok + ltb), s(SRD_C, 4), s(sF + lf)))
    a("s_endpgm")
    a.label("p3_prod")
    w = S_T0 + 9
    a("s_sub_u32 %s, s3, 4" % s(w))
    a("s_lshl_b32 %s, %s, 12" % (s(S_M0B), s(w)))
    s_row0, s_rs, s_ca, s_ldw, s_colb, s_A, s_B = 44, 45, 46, 47, 48, 49, 50
    a("s_lshl_b32 %s, %s, 7" % (s(s_row0), s(S_RT)))
    a("s_mov_b32 %s, 64\ns_mov_b32 %s, 32" % (s(s_A), s(s_B)))
    a("s_waitcnt lgkmcnt(0)")
    l1, l2 = a.new("p3wo"), a.new("p3go")
    a("s_cmp_ge_u32 %s, 11\ns_cbranch_scc1 %s" % (s(S_CT), l1))
    srd(a, SRD_X, 42, WS_X1, SZ_ACT)
    srd(a, SRD_W, 38, 0, D * F * 2)
    a("s_mov_b32 %s, 1024\ns_mov_b32 %s, 32\ns_mov_b32 %s, %d\ns_lshl_b32 %s, %s, 8" % (s(s_rs), s(s_ca), s(s_ldw), F * 2, s(s_colb), s(S_CT)))
    a("s_mov_b32 s52, 128")
    a("s_branch %s" % l2)
    a.label(l1)
    srd(a, SRD_X, 42, WS_O, SZ_ACT)
    srd(a, SRD_W, 40, 0, D * D * 2)
    a("s_mov_b32 %s, 32\ns_mov_b32 %s, 65536\ns_mov_b32 %s, 1024\ns_sub_u32 %s, %s, 11\ns_lshl_b32 %s, %s, 8" % (s(s_rs), s(s_ca), s(s_ldw), s(s_colb), s(S_CT), s(s_colb), s(s_colb)))
    a("s_mov_b32 s52, 262144")
    a.label(l2)
    vx, vw = 8, 12
    big_producer_addr(a, vx, vw, 2, s_row0, s_rs, s_ca, s_ldw, s_colb, s_A, s_B)
    lm = a.new("p3m")
    a("s_cmp_lg_u32 %s, 10\ns_cbranch_scc1 %s" % (s(S_CT), lm))
    for ii in range(4):
        a("v_lshrrev_b32 v2, 4, v0")
        a("v_or_b32 v2, %d, v2" % (((ii >> 1) & 1) << 2))
        a("v_bfe_u32 v3, v0, 1, 3")
        a("v_xor_b32 v2, v2, v3")
        a("v_cmp_le_u32 vcc, 6, v2")
        a("v_mov_b32 v3, 0x40000000")
        a("v_cndmask_b32 %s, %s, v3, vcc" % (v(vw + ii), v(vw + ii)))
    a.label(lm)
    a("s_lshl_b32 s51, %s, 6" % s(s_ldw))
    producer_loop(a, 8, vx, vw, adv(a, vx, "s52"), adv(a, vw, "s51"))
    kernel_tail(a, name)
    return name, R.hi

def gen_p4(a):
    name = "p4_kernel"
    kernel_head(a, name, 256)
    a("s_load_dwordx2 s[38:39], s[0:1], %d" % KA_W4)
    a("s_load_dwordx2 s[40:41], s[0:1], %d" % KA_OUT)
    a("s_load_dwordx2 s[42:43], s[0:1], %d" % KA_WS)
    wave_id(a)
    tile_ids_small(a)
    a("s_cmp_ge_u32 s3, 4\ns_cbranch_scc1 p4_prod")
    wave_mn(a)
    R = Regs(8)
    B = Small(R)
    vtok = R.alloc(2); vtk4 = R.alloc(2)
    B.setup(a, 2)
    small_token_offsets(a, vtok, 1024, 3)
    small_token_offsets(a, vtk4, 2048, 4)
    sF = 70
    a("s_lshl_b32 s4, %s, 7\ns_lshl_b32 s5, %s, 6\ns_add_u32 %s, s4, s5\ns_add_u32 %s, %s, 32" % (s(S_CT), s(S_WN), s(sF), s(sF + 1), s(sF)))
    a("s_lshl_b32 %s, %s, 1\ns_lshl_b32 %s, %s, 1" % (s(sF + 2), s(sF), s(sF + 3), s(sF + 1)))
    a("s_waitcnt lgkmcnt(0)")
    srd(a, SRD_A, 42, WS_BASE, S * D * 4)
    srd(a, SRD_C, 40, 0, SZ_ACT)
    for tb in range(2):
        for f in range(2):
            a("buffer_load_dwordx4 %s, %s, %s, %s offen" % (v(B.A(tb, f), 4), v(vtk4 + tb), s(SRD_A, 4), s(sF + 2 + f)))
    a("s_waitcnt vmcnt(0)")
    mainloop(a, 11, B.reads, B.mfmas)
    mfma_drain(a)
    T = B.xf[0]
    for tb in range(2):
        for f in range(2):
            A = B.A(tb, f); o = T + (tb * 2 + f) * 2
            a("v_cvt_pk_bf16_f32 %s, %s, %s" % (v(o), v(A), v(A + 1)))
            a("v_cvt_pk_bf16_f32 %s, %s, %s" % (v(o + 1), v(A + 2), v(A + 3)))
            a("buffer_store_dwordx2 %s, %s, %s, %s offen" % (v(o, 2), v(vtok + tb), s(SRD_C, 4), s(sF + f)))
    a("s_endpgm")
    a.label("p4_prod")
    w = S_T0 + 9
    a("s_sub_u32 %s, s3, 4" % s(w))
    a("s_lshl_b32 %s, %s, 12" % (s(S_M0B), s(w)))
    s_row0, s_colb = 44, 48
    a("s_lshl_b32 %s, %s, 6" % (s(s_row0), s(S_RT)))
    a("s_lshl_b32 %s, %s, 7" % (s(s_colb), s(S_CT)))
    vx, vw = 8, 12
    small_producer_addr(a, vx, vw, 2, s_row0, LDG, 1024, s_colb)
    a("s_waitcnt lgkmcnt(0)")
    srd(a, SRD_X, 42, WS_G, S * LDG)
    srd(a, SRD_W, 38, 0, F * D * 2)
    producer_loop(a, 11, vx, vw, adv(a, vx, 256), adv(a, vw, 128 * 1024))
    kernel_tail(a, name)
    return name, R.hi

def generate(which=("p1", "p2", "p3", "p4"), extra_launch=0):
    a = Asm()
    gens = {"p1": (gen_p1, LDS_BIG), "p2": (gen_p2, LDS_SMALL), "p3": (gen_p3, LDS_BIG), "p4": (gen_p4, LDS_SMALL)}
    head = ["; x + linear-attention block + mixer/shift MLP, gfx950. Generated by my own generator script (gen.py).",
            "; four launches: P1 LN+qkv/w1 GEMM, P2 w2 GEMM + attention apply, P3 w3 / wo GEMM, P4 w4 GEMM"]
    for p in which:
        head.append("; @launch kernel=%s_kernel grid=(256,1,1) block=(512,1,1) lds=%d" % (p, gens[p][1]))
    for i in range(extra_launch):
        head.append("; @launch kernel=nop_kernel grid=(256,1,1) block=(64,1,1) lds=0")
    head.append('.amdgcn_target "amdgcn-amd-amdhsa--gfx950"\n.text')
    descs = []
    for p in which:
        name, hi = gens[p][0](a)
        descs.append(descriptor(name, (hi + 7) // 8 * 8))
    if extra_launch:
        a.raw(".globl nop_kernel\n.p2align 8\n.type nop_kernel,@function\nnop_kernel:\n  s_endpgm")
        descs.append(descriptor("nop_kernel", 8, 16))
    return "\n".join(head) + "\n" + a.text() + '.section .rodata,"a"\n' + "".join(descs)

if __name__ == "__main__":
    out = sys.argv[1] if len(sys.argv) > 1 else "parallel_sum__linear_attn_block__mixer_s_mlp__prompt.s"
    extra = int(sys.argv[2]) if len(sys.argv) > 2 else 0
    open(out, "w").write(generate(extra_launch=extra))
    print("wrote", out)
```

```python
import sys, math
sys.path.insert(0, "gen")
from asmlib import *

S, D, F = 2048, 512, 1376
FP = 1408
LDG = FP * 2
EPS = 1e-5
LOG2E = 1.4426950408889634
GC0 = 2.0 * math.sqrt(2.0 / math.pi)
KA_X, KA_WQKV, KA_WO, KA_BX, KA_W1, KA_W2, KA_W3, KA_W4, KA_OUT, KA_DBG, KA_WS = [8 * i for i in range(11)]
MB = 1 << 20
WS_PQ   = 0 * MB
WS_H    = 26 * MB
WS_KVP  = 4 * MB
KVP_ST  = 1088
WS_XST  = 5 * MB
WS_X1   = 30 * MB
WS_X1ST = 8 * MB
WS_O    = 9 * MB
WS_G    = 12 * MB
WS_BASE = 34 * MB
SZ_ACT  = S * D * 2
LDA = 1152
SZ_PAD = S * LDA
OOB = 0x40000000

SLOT = 32768
TAB = 4 * SLOT
TAB_M, TAB_R, TAB_C = TAB, TAB + 512, TAB + 1024
SCR = TAB + 2048
LCNT = SCR + 8192
STG = LCNT + 256
LDS_ALL = STG + 16384
LDS_BIG = TAB + 2048
OJ_SCR = 4 * SLOT
LDS_P2 = 4 * SLOT + 8192
LDS_SMALL = 4 * SLOT

S_WAVE = 3
SRD_X, SRD_W, SRD_A, SRD_B, SRD_C, SRD_D = 8, 12, 16, 20, 24, 28
S_RT, S_CT, S_WM, S_WN = 32, 33, 34, 35
P_X, P_WQKV, P_WO, P_BX, P_W1, P_W2, P_W3, P_W4, P_OUT, P_DBG, P_WS = 36, 38, 40, 42, 44, 46, 48, 50, 52, 54, 56
S_ROT, S_G, S_XO, S_WO = 58, 59, 60, 61
S_T0 = 62
S_PW = 71
S_EP = 72
S_PP = 78
S_M0B = 87
S_SY = 88
S_ST = 92
V_ST = 255
WS_CNT = 24 * MB
CNT_H, CNT_X1, CNT_O, CNT_G = 0, 16, 32, 40
NCNT = 56
SPIN_MAX = 200000
SC1 = " sc1"

class Opt:
    prof = False
    rot = True
    prefetch = True
    l2pf = True
    rot1 = True
    depth = 3
OPT = Opt()
WS_PROF = 64 * MB

def stamp(a, i, real=False):
    if OPT.prof:
        a("%s %s" % ("s_memrealtime" if real else "s_memtime", s(S_ST, 2)))
        a("s_waitcnt lgkmcnt(0)")
        a("v_writelane_b32 %s, %s, %d" % (v(V_ST), s(S_ST), i))
def stamp_flush(a):
    if not OPT.prof: return
    stamp(a, 62); stamp(a, 63, True)
    a("s_add_u32 s4, %s, 0x%x\ns_addc_u32 s5, %s, 0" % (s(P_WS), WS_PROF, s(P_WS + 1)))
    a("s_lshl_b32 s6, s2, 3\ns_add_u32 s6, s6, s3\ns_lshl_b32 s6, s6, 8")
    a("s_mov_b64 exec, -1")
    a("v_lshl_add_u32 v4, v0, 2, s6")
    a("global_store_dword v4, %s, s[4:5]" % v(V_ST))
    a("s_waitcnt vmcnt(0)")
def endk(a):
    stamp_flush(a)
    a("s_endpgm")

def srd(a, reg, plo, off, size):
    if off:
        a("s_add_u32 %s, %s, 0x%x" % (s(reg), s(plo), off))
        a("s_addc_u32 %s, %s, 0" % (s(reg + 1), s(plo + 1)))
    else:
        a("s_mov_b32 %s, %s" % (s(reg), s(plo)))
        a("s_mov_b32 %s, %s" % (s(reg + 1), s(plo + 1)))
    a("s_mov_b32 %s, 0x%x" % (s(reg + 2), size))
    a("s_mov_b32 %s, 0x00020000" % s(reg + 3))

def kernel_head(a, name, nwg):
    a.raw(".globl %s\n.p2align 8\n.type %s,@function\n%s:" % (name, name, name))
    a("s_cmp_ge_u32 s2, %d" % nwg)
    a("s_cbranch_scc1 %s_exit" % name)
def kernel_tail(a, name):
    a.label("%s_exit" % name)
    a("s_endpgm")
def descriptor(name, vgpr, sgpr=100):
    return """.p2align 6
.amdhsa_kernel %s
  .amdhsa_next_free_vgpr %d
  .amdhsa_next_free_sgpr %d
  .amdhsa_accum_offset %d
  .amdhsa_group_segment_fixed_size 0
  .amdhsa_kernarg_size 88
  .amdhsa_user_sgpr_count 2
  .amdhsa_user_sgpr_kernarg_segment_ptr 1
  .amdhsa_system_sgpr_workgroup_id_x 1
  .amdhsa_float_denorm_mode_32 3
.end_amdhsa_kernel
""" % (name, vgpr, sgpr, (vgpr + 3) // 4 * 4)

def wave_id(a):
    a("v_lshrrev_b32 v1, 6, v0")
    a("v_and_b32 v0, 63, v0")
    a("v_readfirstlane_b32 s3, v1")

def tile_ids_big(a, mode, rot):
    a("s_and_b32 s4, s2, 7\ns_lshr_b32 s5, s2, 3")
    if mode == "4x8":
        a("s_lshr_b32 s6, s4, 1\ns_lshl_b32 s6, s6, 2\ns_and_b32 s7, s5, 3\ns_add_u32 %s, s6, s7" % s(S_RT))
        a("s_and_b32 s6, s4, 1\ns_lshl_b32 s6, s6, 3\ns_lshr_b32 s5, s5, 2\ns_add_u32 %s, s6, s5" % s(S_CT))
        if rot: a("s_lshl_b32 s7, s7, 1\ns_add_u32 s7, s7, s5\ns_and_b32 %s, s7, 7" % s(S_ROT))
    else:
        a("s_lshl_b32 s6, s4, 1\ns_and_b32 s7, s5, 1\ns_add_u32 %s, s6, s7" % s(S_RT))
        a("s_lshr_b32 %s, s5, 1" % s(S_CT))
        if rot: a("s_lshl_b32 s7, s7, 2\ns_lshr_b32 s6, %s, 1\ns_add_u32 s7, s7, s6\ns_and_b32 %s, s7, 7" % (s(S_CT), s(S_ROT)))
    if not rot: a("s_mov_b32 %s, 0" % s(S_ROT))
def tile_ids_small(a, nst):
    a("s_and_b32 s4, s2, 7\ns_lshr_b32 s5, s2, 3")
    a("s_lshl_b32 s6, s4, 2\ns_and_b32 s7, s5, 3\ns_add_u32 %s, s6, s7" % s(S_RT))
    a("s_lshr_b32 %s, s5, 2" % s(S_CT))
    if not OPT.rot:
        a("s_mov_b32 %s, 0" % s(S_ROT))
    elif nst == 4:
        a("s_add_u32 s7, s7, %s\ns_and_b32 %s, s7, 3" % (s(S_CT), s(S_ROT)))
    else:
        a("s_mul_i32 s7, s7, 3\ns_add_u32 s7, s7, %s\ns_sub_u32 s6, s7, %d\ns_cmp_ge_u32 s7, %d\ns_cselect_b32 %s, s6, s7" % (s(S_CT), nst, nst, s(S_ROT)))
def wave_mn(a):
    a("s_lshr_b32 %s, s3, 1\ns_and_b32 %s, s3, 1" % (s(S_WM), s(S_WN)))

def stage_index(a, st, nst):
    a("s_add_u32 %s, %s, %d" % (s(S_G), s(S_ROT), st))
    if nst & (nst - 1) == 0:
        a("s_and_b32 %s, %s, %d" % (s(S_G), s(S_G), nst - 1))
    else:
        a("s_sub_u32 s4, %s, %d\ns_cmp_ge_u32 %s, %d\ns_cselect_b32 %s, s4, %s" % (s(S_G), nst, s(S_G), nst, s(S_G), s(S_G)))

class Prod:
    def __init__(self, a): self.a = a; self.ops = []
    def add(self, tag, n): self.ops.extend([tag] * n)
    def wait(self, tags):
        idx = [i for i, t in enumerate(self.ops) if t in tags]
        if not idx: return
        n = len(self.ops) - 1 - max(idx)
        assert n <= 63, n
        self.a("s_waitcnt vmcnt(%d)" % n)
        self.ops = self.ops[max(idx) + 1:]
    def wait_all(self):
        self.a("s_waitcnt vmcnt(0)"); self.ops = []
    def part(self, st, which, regs, soff, srd_, sc=""):
        a = self.a
        slot = (st % 4) * SLOT + (16384 if which == "w" else 0)
        for j in range(4):
            a("s_add_u32 m0, %s, 0x%x" % (s(S_M0B), slot + j * 1024))
            a("s_nop 0")
            a("buffer_load_dwordx4 %s, %s, %s offen%s lds" % (v(regs[j]), s(srd_, 4), soff, sc))
        self.add((which, st), 4)

def producer_phase(P, nst, prep_x, prep_w, wpre, depth, stamp0, xsc="", hook=None):
    a = P.a
    def issue(st):
        r, o = prep_x(st); P.part(st, "x", r, o, SRD_X, xsc)
        if st >= wpre:
            r, o = prep_w(st); P.part(st, "w", r, o, SRD_W)
        if hook: hook("issued", st)
    nxt = 0
    for st in range(min(depth, nst)):
        issue(st); nxt += 1
    for st in range(nst):
        if hook: hook("prewait", st)
        P.wait([("x", st), ("w", st)])
        if hook: hook("prebar", st)
        a("s_barrier")
        if st == 0: stamp(a, stamp0)
        if st == nst - 1: stamp(a, stamp0 + 1)
        if nxt < nst and nxt <= st + 3:
            issue(nxt); nxt += 1

def mainloop(a, nst, reads, mfmas, stamp0, last_barrier=True):
    stamp(a, stamp0)
    a("s_barrier")
    stamp(a, stamp0 + 1)
    for r in reads(0, 0, 0): a(r)
    nsteps = 2 * nst
    for n in range(nsteps):
        st, k = n // 2, n % 2
        a("s_waitcnt lgkmcnt(0)")
        if k == 1 and (st + 1 < nst or last_barrier):
            a("s_barrier")
        rd = []
        if n + 1 < nsteps:
            rd = reads((n + 1) // 2, (n + 1) % 2, (n + 1) % 2)
        mf = mfmas(n % 2, n == 0)
        i = 0
        per = max(1, -(-len(rd) // max(1, len(mf))))
        for m in mf:
            a(m)
            for _ in range(per):
                if i < len(rd):
                    a(rd[i]); i += 1
        while i < len(rd):
            a(rd[i]); i += 1
    stamp(a, stamp0 + 2)

def cnt_srd(a):
    srd(a, SRD_D, P_WS, WS_CNT, NCNT * 256)

def signal(a, idx_sgpr_code, vt=2):
    cnt_srd(a)
    a(idx_sgpr_code)
    a("s_lshl_b32 s4, s4, 8")
    a("v_mov_b32 %s, s4\nv_mov_b32 %s, 1" % (v(vt), v(vt + 1)))
    a("s_mov_b64 exec, 1")
    a("buffer_atomic_add %s, %s, %s, 0 offen" % (v(vt + 1), v(vt), s(SRD_D, 4)))
    a("s_mov_b64 exec, -1")

def poll(a, setup_code, vt=2, srd_code=None):
    if srd_code: srd_code()
    else: cnt_srd(a)
    a(setup_code)
    lab, done = a.new("poll"), a.new("polled")
    a("s_mov_b32 %s, 0" % s(S_SY))
    a.label(lab)
    a("buffer_load_dword %s, %s, %s, 0 offen sc1" % (v(vt + 2), v(vt), s(SRD_D, 4)))
    a("s_waitcnt vmcnt(0)")
    a("v_cmp_lt_u32 vcc, %s, %s" % (v(vt + 2), v(vt + 1)))
    a("s_add_u32 %s, %s, 1" % (s(S_SY), s(S_SY)))
    a("s_cmp_ge_u32 %s, %d" % (s(S_SY), SPIN_MAX))
    a("s_cbranch_scc1 %s" % done)
    a("s_cbranch_vccz %s" % done)
    a("s_sleep 1")
    a("s_branch %s" % lab)
    a.label(done)

def mm(d, A, B, zero=False):
    return "v_mfma_f32_16x16x32_bf16 %s, %s, %s, %s" % (v(d, 4), v(A, 4), v(B, 4), "0" if zero else v(d, 4))

class Big:
    def __init__(self, R, gram, cs):
        self.vxa = R.alloc(8); self.vwa = R.alloc(8)
        self.xf = [R.alloc(16, 4), None]; self.wf = [R.alloc(16, 4), None]
        self.xf[1] = R.alloc(16, 4); self.wf[1] = R.alloc(16, 4)
        self.acc = R.alloc(64, 4)
        self.gram = R.alloc(8, 4) if gram else None
        self.rs = R.alloc(8, 4) if gram else None
        self.cs = R.alloc(8, 4) if cs else None
        self.ones = R.alloc(4, 4) if (gram or cs) else None
        self.zero_first = True
        self.use_cs = cs
    def A(self, ltb, lf): return self.acc + (ltb * 4 + lf) * 4
    def setup(self, a, t0):
        vt, vq, vf, vtmp, vg, vk = t0, t0 + 1, t0 + 2, t0 + 3, t0 + 4, t0 + 5
        a("v_and_b32 %s, 15, v0" % v(vt))
        a("v_lshrrev_b32 %s, 4, v0" % v(vq))
        a("v_bfe_u32 %s, v0, 1, 3" % v(vf))
        a("s_lshl_b32 %s, %s, 13" % (s(S_T0), s(S_WM)))
        a("s_lshl_b32 %s, %s, 12" % (s(S_T0 + 1), s(S_WN)))
        a("s_xor_b32 %s, %s, 0x1000" % (s(S_T0 + 2), s(S_T0 + 1)))
        a("s_add_u32 %s, %s, %s" % (s(S_T0 + 1), s(S_T0 + 1), s(S_T0)))
        a("s_add_u32 %s, %s, %s" % (s(S_T0 + 2), s(S_T0 + 2), s(S_T0)))
        a("v_xor_b32 %s, %s, %s" % (v(vtmp), v(vq), v(vf)))
        a("v_lshlrev_b32 %s, 4, %s" % (v(vtmp), v(vtmp)))
        a("v_lshl_add_u32 %s, %s, 7, %s" % (v(vtmp), v(vt), v(vtmp)))
        for grp in range(2):
            r0 = self.vxa + grp * 2; r1 = self.vxa + 4 + grp * 2
            a("v_add_u32 %s, %s, %s" % (v(r0), s(S_T0 + 1 + grp), v(vtmp)))
            a("v_xor_b32 %s, 64, %s" % (v(r1), v(r0)))
            a("v_add_u32 %s, 0x10000, %s" % (v(r0 + 1), v(r0)))
            a("v_add_u32 %s, 0x10000, %s" % (v(r1 + 1), v(r1)))
        a("v_bfe_u32 %s, v0, 2, 2" % v(vf))
        a("v_and_b32 %s, 1, %s" % (v(vg), v(vq)))
        a("v_lshl_or_b32 %s, %s, 2, %s" % (v(vg), v(vg), v(vf)))
        a("v_lshl_add_u32 %s, %s, 3, %s" % (v(vk), v(vq), v(vf)))
        a("v_lshlrev_b32 %s, 8, %s" % (v(vk), v(vk)))
        a("v_and_b32 %s, 3, v0" % v(vtmp))
        a("v_lshl_add_u32 %s, %s, 3, %s" % (v(vk), v(vtmp), v(vk)))
        a("v_add_u32 %s, 0x4000, %s" % (v(vk), v(vk)))
        a("s_lshl_b32 %s, %s, 2" % (s(S_T0), s(S_WN)))
        a("s_lshl_b32 %s, %s, 1" % (s(S_T0 + 1), s(S_WM)))
        a("s_add_u32 %s, %s, %s" % (s(S_T0), s(S_T0), s(S_T0 + 1)))
        a("v_xor_b32 %s, %s, %s" % (v(vtmp), s(S_T0), v(vg)))
        a("v_lshl_add_u32 %s, %s, 5, %s" % (v(self.vwa), v(vtmp), v(vk)))
        for lf in range(1, 4):
            a("v_xor_b32 %s, %d, %s" % (v(self.vwa + 2 * lf), lf * 32, v(self.vwa)))
        for lf in range(4):
            a("v_add_u32 %s, 0x10000, %s" % (v(self.vwa + 2 * lf + 1), v(self.vwa + 2 * lf)))
        if self.ones is not None:
            for i in range(4): a("v_mov_b32 %s, 0x3f803f80" % v(self.ones + i))
    def reads(self, st, kk, set_):
        slot = st % 4; hi = slot >> 1; off = (slot & 1) * SLOT
        out = []
        for i in range(4):
            out.append("ds_read_b128 %s, %s offset:%d" % (v(self.xf[set_] + i * 4, 4), v(self.vxa + kk * 4 + (i >> 1) * 2 + hi), off + (i & 1) * 2048))
            for hh in range(2):
                out.append("ds_read_b64_tr_b16 %s, %s offset:%d" % (v(self.wf[set_] + i * 4 + hh * 2, 2), v(self.vwa + i * 2 + hi), off + kk * 8192 + hh * 1024))
        return out
    def mfmas(self, set_, first, swapped):
        out = []
        xf, wf = self.xf[set_], self.wf[set_]
        for ltb in range(4):
            for lf in range(4):
                z = first and self.zero_first
                if swapped: out.append(mm(self.A(ltb, lf), wf + 4 * lf, xf + 4 * ltb, z))
                else:       out.append(mm(self.A(ltb, lf), xf + 4 * ltb, wf + 4 * lf, z))
        if self.gram is not None:
            for i in range(2):
                out.append(mm(self.gram + 4 * i, xf + 4 * i, xf + 4 * i, first))
                out.append(mm(self.rs + 4 * i, self.ones, xf + 4 * i, first))
        if self.use_cs:
            for i in range(2):
                out.append(mm(self.cs + 4 * i, self.ones, wf + 4 * i, first))
        return out

def u24mul(a, d, x, sreg):
    a("v_mul_u32_u24 %s, %s, %s" % (v(d), s(sreg), v(x)))

def big_addr_x(a, vx, t0, s_row0, s_rs, s_ca):
    w = S_PW
    t1, t2, t3, t4 = t0, t0 + 1, t0 + 2, t0 + 3
    a("v_lshrrev_b32 %s, 4, v0" % v(t4))
    a("v_and_b32 %s, 7, v0" % v(t1))
    a("v_xor_b32 %s, %s, %s" % (v(t1), v(t1), v(t4)))
    a("v_lshrrev_b32 %s, 1, %s" % (v(t2), v(t1)))
    a("v_xor_b32 %s, 2, %s" % (v(t3), v(t2)))
    u24mul(a, t2, t2, s_ca); u24mul(a, t3, t3, s_ca)
    a("v_and_b32 %s, 1, %s" % (v(t1), v(t1)))
    a("v_lshlrev_b32 %s, 4, %s" % (v(t1), v(t1)))
    a("v_add_u32 %s, %s, %s" % (v(t2), v(t2), v(t1)))
    a("v_add_u32 %s, %s, %s" % (v(t3), v(t3), v(t1)))
    a("s_lshl_b32 %s, %s, 5\ns_add_u32 %s, %s, %s" % (s(S_T0), s(w), s(S_T0), s(S_T0), s(s_row0)))
    a("v_lshrrev_b32 %s, 3, v0" % v(t1))
    a("v_add_u32 %s, %s, %s" % (v(t1), s(S_T0), v(t1)))
    u24mul(a, t1, t1, s_rs)
    a("s_lshl_b32 %s, %s, 3\ns_lshl_b32 %s, %s, 4" % (s(S_T0), s(s_rs), s(S_T0 + 1), s(s_rs)))
    a("v_add_u32 %s, %s, %s" % (v(vx), v(t1), v(t2)))
    a("v_add3_u32 %s, %s, %s, %s" % (v(vx + 1), v(t1), v(t3), s(S_T0)))
    a("v_add_u32 %s, %s, %s" % (v(vx + 2), s(S_T0 + 1), v(vx)))
    a("v_add_u32 %s, %s, %s" % (v(vx + 3), s(S_T0 + 1), v(vx + 1)))
def big_addr_w(a, vw, t0, s_ldw, s_colb, s_A, s_B):
    w = S_PW
    t1, t2, t3, t4 = t0, t0 + 1, t0 + 2, t0 + 3
    a("v_lshrrev_b32 %s, 4, v0" % v(t4))
    a("v_bfe_u32 %s, v0, 1, 3" % v(t1))
    a("v_xor_b32 %s, %s, %s" % (v(t1), v(t1), v(t4)))
    a("v_lshrrev_b32 %s, 1, %s" % (v(t2), v(t1)))
    a("v_xor_b32 %s, 2, %s" % (v(t3), v(t2)))
    u24mul(a, t2, t2, s_A); u24mul(a, t3, t3, s_A)
    a("v_and_b32 %s, 1, %s" % (v(t1), v(t1)))
    u24mul(a, t1, t1, s_B)
    a("v_and_b32 %s, 1, v0" % v(vw))
    a("v_lshl_add_u32 %s, %s, 4, %s" % (v(t1), v(vw), v(t1)))
    a("v_add3_u32 %s, %s, %s, %s" % (v(t2), v(t2), v(t1), s(s_colb)))
    a("v_add3_u32 %s, %s, %s, %s" % (v(t3), v(t3), v(t1), s(s_colb)))
    a("s_lshl_b32 %s, %s, 4" % (s(S_T0), s(w)))
    a("v_add_u32 %s, %s, %s" % (v(t1), s(S_T0), v(t4)))
    u24mul(a, t1, t1, s_ldw)
    a("s_lshl_b32 %s, %s, 2\ns_lshl_b32 %s, %s, 3" % (s(S_T0), s(s_ldw), s(S_T0 + 1), s(s_ldw)))
    a("v_add_u32 %s, %s, %s" % (v(vw), v(t1), v(t2)))
    a("v_add_u32 %s, %s, %s" % (v(vw + 1), s(S_T0), v(vw)))
    a("v_add3_u32 %s, %s, %s, %s" % (v(vw + 2), v(t1), v(t3), s(S_T0 + 1)))
    a("v_add_u32 %s, %s, %s" % (v(vw + 3), s(S_T0), v(vw + 2)))

class Small:
    def __init__(self, R):
        self.vxa = R.alloc(8); self.vwa = R.alloc(4)
        self.xf = [R.alloc(16, 4), R.alloc(16, 4)]
        self.wf = [R.alloc(16, 4), R.alloc(16, 4)]
        self.acc = R.alloc(16, 4)
    def A(self, tb, f): return self.acc + (tb * 2 + f) * 4
    def setup(self, a, t0):
        vt, vq, vb, vtmp, vg, vk = t0, t0 + 1, t0 + 2, t0 + 3, t0 + 4, t0 + 5
        a("v_and_b32 %s, 15, v0" % v(vt))
        a("v_lshrrev_b32 %s, 4, v0" % v(vq))
        a("v_xor_b32 %s, %s, %s" % (v(vb), v(vq), v(vt)))
        a("v_lshlrev_b32 %s, 4, %s" % (v(vb), v(vb)))
        a("v_lshl_add_u32 %s, %s, 8, %s" % (v(vb), v(vt), v(vb)))
        a("s_lshl_b32 %s, %s, 13" % (s(S_T0), s(S_WM)))
        a("v_add_u32 %s, %s, %s" % (v(self.vxa), s(S_T0), v(vb)))
        for kk in range(1, 4):
            a("v_xor_b32 %s, %d, %s" % (v(self.vxa + 2 * kk), kk * 64, v(self.vxa)))
        for kk in range(4):
            a("v_add_u32 %s, 0x10000, %s" % (v(self.vxa + 2 * kk + 1), v(self.vxa + 2 * kk)))
        a("v_bfe_u32 %s, v0, 2, 2" % v(vb))
        a("v_lshl_add_u32 %s, %s, 3, %s" % (v(vk), v(vq), v(vb)))
        a("v_lshlrev_b32 %s, 7, %s" % (v(vk), v(vk)))
        a("v_and_b32 %s, 3, v0" % v(vtmp))
        a("v_lshl_add_u32 %s, %s, 3, %s" % (v(vk), v(vtmp), v(vk)))
        a("v_add_u32 %s, 0x4000, %s" % (v(vk), v(vk)))
        a("v_lshrrev_b32 %s, 1, %s" % (v(vb), v(vb)))
        a("v_and_b32 %s, 1, %s" % (v(vg), v(vq)))
        a("v_lshl_or_b32 %s, %s, 1, %s" % (v(vg), v(vg), v(vb)))
        a("s_lshl_b32 %s, %s, 1" % (s(S_T0), s(S_WN)))
        a("v_xor_b32 %s, %s, %s" % (v(vtmp), s(S_T0), v(vg)))
        a("v_lshl_add_u32 %s, %s, 5, %s" % (v(self.vwa), v(vtmp), v(vk)))
        a("v_xor_b32 %s, 32, %s" % (v(self.vwa + 2), v(self.vwa)))
        for f in range(2):
            a("v_add_u32 %s, 0x10000, %s" % (v(self.vwa + 2 * f + 1), v(self.vwa + 2 * f)))
    def reads(self, st, step, set_):
        slot = st % 4; hi = slot >> 1; off = (slot & 1) * SLOT
        out = []
        for k2 in range(2):
            kk = step * 2 + k2
            for i in range(2):
                out.append("ds_read_b128 %s, %s offset:%d" % (v(self.xf[set_] + k2 * 8 + i * 4, 4), v(self.vxa + kk * 2 + hi), off + i * 4096))
                for hh in range(2):
                    out.append("ds_read_b64_tr_b16 %s, %s offset:%d" % (v(self.wf[set_] + k2 * 8 + i * 4 + hh * 2, 2), v(self.vwa + i * 2 + hi), off + kk * 4096 + hh * 512))
        return out
    def mfmas(self, set_, first):
        out = []
        for k2 in range(2):
            for tb in range(2):
                for f in range(2):
                    out.append(mm(self.A(tb, f), self.wf[set_] + k2 * 8 + f * 4, self.xf[set_] + k2 * 8 + tb * 4))
        return out

def small_addr_x(a, vx, t0, s_row0, ldx, rows_per_wave=16):
    w = S_PW
    t1, t2, t3, t4 = t0, t0 + 1, t0 + 2, t0 + 3
    a("v_lshrrev_b32 %s, 4, v0" % v(t4))
    a("v_and_b32 %s, 15, v0" % v(t2))
    a("v_xor_b32 %s, %s, %s" % (v(t2), v(t2), v(t4)))
    a("v_lshlrev_b32 %s, 4, %s" % (v(t2), v(t2)))
    a("s_lshl_b32 %s, %s, 4\ns_add_u32 %s, %s, %s" % (s(S_T0), s(w), s(S_T0), s(S_T0), s(s_row0)))
    a("v_add_u32 %s, %s, %s" % (v(t1), s(S_T0), v(t4)))
    a("s_mov_b32 %s, %d" % (s(S_T0), ldx))
    u24mul(a, t1, t1, S_T0)
    for jj in range(4):
        if jj: a("v_xor_b32 %s, %d, %s" % (v(t3), jj * 64, v(t2)))
        a("s_mov_b32 %s, %d" % (s(S_T0), jj * 4 * ldx))
        a("v_add3_u32 %s, %s, %s, %s" % (v(vx + jj), v(t1), v(t3 if jj else t2), s(S_T0)))
def small_addr_w(a, vw, t0, ldw, s_colb):
    w = S_PW
    t1, t2, t3, t4 = t0, t0 + 1, t0 + 2, t0 + 3
    a("v_bfe_u32 %s, v0, 4, 1" % v(t2))
    a("v_bfe_u32 %s, v0, 1, 2" % v(t3))
    a("v_xor_b32 %s, %s, %s" % (v(t2), v(t2), v(t3)))
    a("v_lshlrev_b32 %s, 5, %s" % (v(t2), v(t2)))
    a("v_and_b32 %s, 1, v0" % v(t3))
    a("v_lshl_add_u32 %s, %s, 4, %s" % (v(t2), v(t3), v(t2)))
    a("v_xor_b32 %s, 64, %s" % (v(t3), v(t2)))
    a("s_lshl_b32 %s, %s, 5" % (s(S_T0), s(w)))
    a("v_lshrrev_b32 %s, 3, v0" % v(t1))
    a("v_add_u32 %s, %s, %s" % (v(t1), s(S_T0), v(t1)))
    a("s_mov_b32 %s, %d" % (s(S_T0), ldw))
    u24mul(a, t1, t1, S_T0)
    a("v_add_u32 %s, %s, %s" % (v(t1), s(s_colb), v(t1)))
    for ii in range(4):
        a("s_mov_b32 %s, %d" % (s(S_T0), ii * 8 * ldw))
        a("v_add3_u32 %s, %s, %s, %s" % (v(vw + ii), v(t1), v(t3 if ii & 1 else t2), s(S_T0)))

DIAG = 0
for _q in range(4): DIAG |= 0xF << (20 * _q)
def set_exec(a, mask):
    a("s_mov_b32 exec_lo, 0x%x" % (mask & 0xffffffff))
    a("s_mov_b32 exec_hi, 0x%x" % (mask >> 32))
def full_exec(a): a("s_mov_b64 exec, -1")
def mfma_drain(a): a("s_nop 7\ns_nop 3")
def unpack_bf16(a, dlo, dhi, src):
    a("v_lshlrev_b32 %s, 16, %s" % (v(dlo), v(src)))
    a("v_and_b32 %s, 0xffff0000, %s" % (v(dhi), v(src)))
def swap_pair(a, o):
    a("v_permlane16_swap_b32 %s, %s" % (v(o), v(o + 2)))
    a("v_permlane16_swap_b32 %s, %s" % (v(o + 1), v(o + 3)))
def xlane_sum_q(a, r, t):
    a("v_mov_b32 %s, %s" % (v(t), v(r)))
    a("s_nop 1")
    a("v_permlane32_swap_b32 %s, %s" % (v(t), v(r)))
    a("s_nop 1")
    a("v_add_f32 %s, %s, %s" % (v(r), v(r), v(t)))
    a("v_mov_b32 %s, %s" % (v(t), v(r)))
    a("s_nop 1")
    a("v_permlane16_swap_b32 %s, %s" % (v(t), v(r)))
    a("s_nop 1")
    a("v_add_f32 %s, %s, %s" % (v(r), v(r), v(t)))

def l2_prefetch_unused(a, jobs, vbase=44, vdst=48):
    a("s_lshr_b32 s4, s2, 3\ns_lshl_b32 s4, s4, 2\ns_add_u32 s4, s4, %s\ns_lshl_b32 s4, s4, 10" % s(S_PW))
    a("v_lshl_add_u32 %s, v0, 4, s4" % v(vbase))
    n = 0
    for (r, nbytes) in jobs:
        cnt = -(-nbytes // (128 * 1024))
        for i in range(cnt):
            a("v_add_u32 %s, 0x%x, %s" % (v(vbase + 1), i * 128 * 1024, v(vbase)))
            a("buffer_load_dwordx4 %s, %s, %s, 0 offen" % (v(vdst + 4 * (n % 4), 4), v(vbase + 1), s(r, 4)))
            n += 1
    return n
```

```python
from g3_common import *

def stats_from_gram(a, B, T, store_xstat):
    sm = S_T0 + 2
    for i, pat in enumerate((0x22222222, 0x44444444, 0x88888888)):
        a("s_mov_b32 %s, 0x%x\ns_mov_b32 %s, 0x%x" % (s(sm + 2 * i), pat, s(sm + 2 * i + 1), pat))
    vtok = T
    a("s_lshl_b32 s4, %s, 8\ns_lshl_b32 s5, %s, 7\ns_add_u32 s4, s4, s5\ns_add_u32 s4, s4, 0x%x" % (s(S_WM), s(S_WN), TAB))
    a("v_and_b32 %s, 15, v0" % v(vtok))
    a("v_lshl_add_u32 %s, %s, 2, s4" % (v(vtok + 1), v(vtok)))
    for i in range(2):
        pm = T + 2 + 4 * i
        g = B.gram + 4 * i
        a("v_cndmask_b32 %s, %s, %s, %s" % (v(pm + 2), v(g), v(g + 1), s(sm, 2)))
        a("v_mul_f32 %s, %s, %s" % (v(pm), fh(1.0 / D), v(B.rs + 4 * i)))
        a("v_cndmask_b32 %s, %s, %s, %s" % (v(pm + 2), v(pm + 2), v(g + 2), s(sm + 2, 2)))
        a("v_cndmask_b32 %s, %s, %s, %s" % (v(pm + 2), v(pm + 2), v(g + 3), s(sm + 4, 2)))
        a("v_mul_f32 %s, %s, %s" % (v(pm + 2), fh(1.0 / D), v(pm + 2)))
        a("v_fma_f32 %s, -%s, %s, %s" % (v(pm + 2), v(pm), v(pm), v(pm + 2)))
        a("v_add_f32 %s, %s, %s" % (v(pm + 2), fh(EPS), v(pm + 2)))
        a("v_rsq_f32 %s, %s" % (v(pm + 1), v(pm + 2)))
    a("s_nop 0")
    set_exec(a, DIAG)
    for i in range(2):
        pm = T + 2 + 4 * i
        a("ds_write_b32 %s, %s offset:%d" % (v(vtok + 1), v(pm), i * 64))
        a("ds_write_b32 %s, %s offset:%d" % (v(vtok + 1), v(pm + 1), 512 + i * 64))
    if store_xstat:
        lab = a.new("noxst")
        a("s_cmp_lg_u32 %s, 0\ns_cbranch_scc1 %s" % (s(S_CT), lab))
        a("s_lshl_b32 s4, %s, 7\ns_lshl_b32 s5, %s, 6\ns_add_u32 s4, s4, s5\ns_lshl_b32 s5, %s, 5\ns_add_u32 s4, s4, s5" % (s(S_RT), s(S_WM), s(S_WN)))
        a("v_add_u32 %s, s4, %s" % (v(T + 10), v(vtok)))
        a("v_lshlrev_b32 %s, 3, %s" % (v(T + 10), v(T + 10)))
        for i in range(2):
            a("buffer_store_dwordx2 %s, %s, %s, 0 offen offset:%d%s" % (v(T + 2 + 4 * i, 2), v(T + 10), s(SRD_C, 4), i * 128, SC1))
        a.label(lab)
    full_exec(a)

def colsum_to_table(a, B, T):
    a("s_lshl_b32 s4, %s, 8\ns_lshl_b32 s5, %s, 7\ns_add_u32 s4, s4, s5\ns_add_u32 s4, s4, 0x%x" % (s(S_WN), s(S_WM), TAB_C))
    a("v_and_b32 %s, 15, v0" % v(T))
    a("v_lshl_add_u32 %s, %s, 2, s4" % (v(T), v(T)))
    for i in range(2):
        a("ds_write_b32 %s, %s offset:%d" % (v(T), v(B.cs + 4 * i), i * 64))

def swapped_table_reads(a, T):
    vb0, vb1, vc0, vc1 = T, T + 1, T + 2, T + 3
    vm, vr_ = T + 4, T + 8
    cs = T + 12
    a("s_lshl_b32 s4, %s, 8\ns_add_u32 s4, s4, 0x%x" % (s(S_WM), TAB_M))
    a("s_lshl_b32 s5, %s, 7\ns_xor_b32 s6, s5, 128\ns_add_u32 s5, s5, s4\ns_add_u32 s6, s6, s4" % s(S_WN))
    a("v_and_b32 %s, 15, v0" % v(vm))
    a("v_lshl_add_u32 %s, %s, 2, s5" % (v(vb0), v(vm)))
    a("v_lshl_add_u32 %s, %s, 2, s6" % (v(vb1), v(vm)))
    a("s_lshl_b32 s4, %s, 8\ns_add_u32 s4, s4, 0x%x" % (s(S_WN), TAB_C))
    a("s_lshl_b32 s5, %s, 7\ns_xor_b32 s6, s5, 128\ns_add_u32 s5, s5, s4\ns_add_u32 s6, s6, s4" % s(S_WM))
    a("v_lshrrev_b32 %s, 4, v0" % v(vm))
    a("v_lshl_add_u32 %s, %s, 4, s5" % (v(vc0), v(vm)))
    a("v_lshl_add_u32 %s, %s, 4, s6" % (v(vc1), v(vm)))
    for ltb in range(4):
        b = vb0 + (ltb >> 1)
        a("ds_read_b32 %s, %s offset:%d" % (v(vm + ltb), v(b), (ltb & 1) * 64))
        a("ds_read_b32 %s, %s offset:%d" % (v(vr_ + ltb), v(b), 512 + (ltb & 1) * 64))
    for lf in range(4):
        a("ds_read_b128 %s, %s offset:%d" % (v(cs + 4 * lf, 4), v(vc0 + (lf >> 1)), (lf & 1) * 64))
    return vm, vr_, cs

def big_token_offsets(a, dst, rs_shift=None, rs_sgpr=None, lanefn=None):
    a("s_lshl_b32 s4, %s, 7\ns_lshl_b32 s5, %s, 6\ns_add_u32 s4, s4, s5" % (s(S_RT), s(S_WM)))
    a("s_lshl_b32 s5, %s, 5\ns_xor_b32 s6, s5, 32\ns_add_u32 s5, s5, s4\ns_add_u32 s6, s6, s4" % s(S_WN))
    a("v_and_b32 %s, 15, v0" % v(dst + 1))
    a("v_add_u32 %s, s5, %s" % (v(dst), v(dst + 1)))
    a("v_add_u32 %s, s6, %s" % (v(dst + 2), v(dst + 1)))
    lanefn(dst + 1)
    for r in (dst, dst + 2):
        if rs_shift is not None:
            a("v_lshl_add_u32 %s, %s, %d, %s" % (v(r), v(r), rs_shift, v(dst + 1)))
        else:
            a("v_mad_u32_u24 %s, %s, %s, %s" % (v(r), v(r), s(rs_sgpr), v(dst + 1)))
    if rs_shift is not None:
        a("v_add_u32 %s, %d, %s" % (v(dst + 1), 16 << rs_shift, v(dst)))
        a("v_add_u32 %s, %d, %s" % (v(dst + 3), 16 << rs_shift, v(dst + 2)))
    else:
        a("s_lshl_b32 s4, %s, 4" % s(rs_sgpr))
        a("v_add_u32 %s, s4, %s" % (v(dst + 1), v(dst)))
        a("v_add_u32 %s, s4, %s" % (v(dst + 3), v(dst + 2)))

def lane_pair(pair_stride):
    def f(a):
        def g(r):
            a("v_bfe_u32 v1, v0, 4, 1")
            if pair_stride & (pair_stride - 1) == 0:
                a("v_lshlrev_b32 v1, %d, v1" % int(math.log2(pair_stride)))
            a("v_lshrrev_b32 %s, 5, v0" % v(r))
            a("v_lshl_add_u32 %s, %s, 4, v1" % (v(r), v(r)))
        return g
    return f
def lane_q(shift):
    def f(a):
        def g(r):
            a("v_lshrrev_b32 %s, 4, v0" % v(r))
            a("v_lshlrev_b32 %s, %d, %s" % (v(r), shift, v(r)))
        return g
    return f

def pair_soffsets(a, sdst, sbase, fshift):
    a("s_lshl_b32 s5, %s, %d" % (s(S_WM), fshift + 1))
    a("s_add_u32 %s, %s, s5" % (s(sdst), s(sbase)))
    a("s_xor_b32 s5, s5, %d" % (2 << fshift))
    a("s_add_u32 %s, %s, s5" % (s(sdst + 1), s(sbase)))
def feat_soffsets(a, sdst, sbase, fshift):
    a("s_lshl_b32 s5, %s, 1" % s(S_WM))
    for lf in range(4):
        a("s_xor_b32 s6, s5, %d\ns_lshl_b32 s6, s6, %d\ns_add_u32 %s, s6, %s" % (lf, fshift, s(sdst + lf), s(sbase)))

class Pending:
    def __init__(self, a): self.a = a; self.p = None
    def put(self, o, vaddr, srd_, soff):
        self.p = (o, vaddr, srd_, soff)
    def flush(self, nop=False):
        if self.p is None: return
        o, vaddr, srd_, soff = self.p
        if nop: self.a("s_nop 1")
        swap_pair(self.a, o)
        self.a("buffer_store_dwordx4 %s, %s, %s, %s offen%s" % (v(o, 4), v(vaddr), s(srd_, 4), soff, SC1))
        self.p = None

class Stager:
    def __init__(self, a, vw, vr, vg, srd_out, s_col, s_col8, rd):
        self.a, self.vw, self.vr, self.vg, self.srd, self.s0, self.s1, self.rd = a, vw, vr, vg, srd_out, s_col, s_col8, rd
        self.pend = None
    @staticmethod
    def setup(a, vw, vr, vg, rs_shift=None, rs_sgpr=None):
        a("s_lshl_b32 s4, s3, 12\ns_add_u32 s4, s4, 0x%x" % STG)
        a("s_lshl_b32 s5, %s, 2" % s(S_WM))
        a("v_lshrrev_b32 %s, 5, v0\nv_add_u32 %s, s5, %s" % (v(vw), v(vw), v(vw)))
        a("v_and_b32 %s, 7, v0\nv_xor_b32 %s, %s, %s\nv_lshlrev_b32 %s, 4, %s" % (v(vw + 1), v(vw), v(vw), v(vw + 1), v(vw), v(vw)))
        a("v_and_b32 %s, 15, v0\nv_lshl_add_u32 %s, %s, 7, %s" % (v(vw + 1), v(vw), v(vw + 1), v(vw)))
        a("v_bfe_u32 %s, v0, 4, 1\nv_lshl_add_u32 %s, %s, 3, %s" % (v(vw + 1), v(vw), v(vw + 1), v(vw)))
        a("v_add_u32 %s, s4, %s" % (v(vw), v(vw)))
        for lf in range(1, 4): a("v_xor_b32 %s, %d, %s" % (v(vw + lf), lf * 32, v(vw)))
        a("v_lshrrev_b32 %s, 3, v0\nv_and_b32 %s, 7, v0\nv_xor_b32 %s, %s, %s\nv_lshlrev_b32 %s, 4, %s" % (v(vg), v(vg + 1), v(vr), v(vg), v(vg + 1), v(vr), v(vr)))
        a("v_lshl_add_u32 %s, %s, 7, %s\nv_add_u32 %s, s4, %s" % (v(vr), v(vg), v(vr), v(vr), v(vr)))
        a("s_lshl_b32 s4, %s, 7\ns_lshl_b32 s5, %s, 6\ns_add_u32 s4, s4, s5" % (s(S_RT), s(S_WM)))
        a("s_lshl_b32 s5, %s, 5\ns_xor_b32 s6, s5, 32\ns_add_u32 s5, s5, s4\ns_add_u32 s6, s6, s4" % s(S_WN))
        a("v_lshlrev_b32 %s, 4, %s" % (v(vg + 1), v(vg + 1)))
        a("v_add_u32 %s, s6, %s\nv_add_u32 %s, s5, %s" % (v(vg + 2), v(vg), v(vg), v(vg)))
        for r in (vg, vg + 2):
            if rs_shift is not None: a("v_lshl_add_u32 %s, %s, %d, %s" % (v(r), v(r), rs_shift, v(vg + 1)))
            else: a("v_mad_u32_u24 %s, %s, %s, %s" % (v(r), v(r), s(rs_sgpr), v(vg + 1)))
        if rs_shift is not None:
            a("v_add_u32 %s, %d, %s\nv_add_u32 %s, %d, %s" % (v(vg + 1), 16 << rs_shift, v(vg), v(vg + 3), 16 << rs_shift, v(vg + 2)))
        else:
            a("s_lshl_b32 s4, %s, 4" % s(rs_sgpr))
            a("v_add_u32 %s, s4, %s\nv_add_u32 %s, s4, %s" % (v(vg + 1), v(vg), v(vg + 3), v(vg + 2)))
    def put(self, ltb, half, o):
        for i in range(2):
            self.a("ds_write_b64 %s, %s offset:%d" % (v(self.vw + 2 * half + i), v(o + 2 * i, 2), (ltb & 1) * 2048))
        if half == 1:
            for i in range(2):
                self.a("ds_read_b128 %s, %s offset:%d" % (v(self.rd + 8 * (ltb & 1) + 4 * i, 4), v(self.vr), (ltb & 1) * 2048 + i * 1024))
            self.pend = ltb
    def flush(self):
        if self.pend is None: return
        ltb = self.pend; self.pend = None
        self.a("s_waitcnt lgkmcnt(0)")
        for i in range(2):
            self.a("buffer_store_dwordx4 %s, %s, %s, %s offen%s" % (v(self.rd + 8 * (ltb & 1) + 4 * i, 4), v(self.vg + ltb), s(self.srd, 4), s(self.s1 if i else self.s0), SC1))

def gelu_epilogue(a, B, T, double_ln, stg):
    vm, vr_, cs = swapped_table_reads(a, T)
    P = T + 28
    W = P + 16
    assert W + 16 <= T + 64 + 0
    a("s_waitcnt lgkmcnt(0)")
    if double_ln:
        for ltb in range(4):
            R = vr_ + ltb; t = W + ltb
            a("v_mul_f32 %s, %s, %s" % (v(t), v(R), v(R)))
            a("v_mul_f32 %s, %s, %s" % (v(t), fh(-EPS), v(t)))
            a("v_add_f32 %s, %s, %s" % (v(t), fh(1.0 + EPS), v(t)))
            a("v_rsq_f32 %s, %s" % (v(t), v(t)))
        a("s_nop 0")
        for ltb in range(4):
            a("v_mul_f32 %s, %s, %s" % (v(vr_ + ltb), v(vr_ + ltb), v(W + ltb)))
    for ltb in range(4):
        p0, p1 = P + 4 * ltb, P + 4 * ltb + 2
        R = vr_ + ltb; t = W + ltb
        a("v_sub_f32 %s, 0, %s" % (v(p0), v(vm + ltb)))
        a("v_mul_f32 %s, %s, %s" % (v(p0 + 1), fh(-GC0 * LOG2E), v(R)))
        a("v_mul_f32 %s, %s, %s" % (v(t), v(R), v(R)))
        a("v_rcp_f32 %s, %s" % (v(p1 + 1), v(R)))
        a("v_mul_f32 %s, %s, %s" % (v(t), v(t), v(p0 + 1)))
        a("v_mul_f32 %s, %s, %s" % (v(p1), fh(0.044715), v(t)))
    gi = 0
    for ltb in range(4):
        p0, p1 = P + 4 * ltb, P + 4 * ltb + 2
        for half in range(2):
            prs = [(B.A(ltb, 2 * half + i // 2) + 2 * (i % 2), cs + 4 * (2 * half + i // 2) + 2 * (i % 2), W + 2 * i) for i in range(4)]
            for (A, C, t) in prs: a("v_pk_fma_f32 %s, %s, %s, %s op_sel_hi:[1,0,1]" % (v(A, 2), v(C, 2), v(p0, 2), v(A, 2)))
            for (A, C, t) in prs: a("v_pk_mul_f32 %s, %s, %s" % (v(t, 2), v(A, 2), v(A, 2)))
            for (A, C, t) in prs: a("v_pk_fma_f32 %s, %s, %s, %s op_sel:[0,0,1] op_sel_hi:[1,0,1]" % (v(t, 2), v(t, 2), v(p1, 2), v(p0, 2)))
            stg.flush()
            for (A, C, t) in prs: a("v_pk_mul_f32 %s, %s, %s" % (v(t, 2), v(A, 2), v(t, 2)))
            for (A, C, t) in prs:
                a("v_exp_f32 %s, %s" % (v(t), v(t))); a("v_exp_f32 %s, %s" % (v(t + 1), v(t + 1)))
            for (A, C, t) in prs: a("v_pk_fma_f32 %s, %s, %s, %s op_sel:[0,1,1] op_sel_hi:[1,1,1]" % (v(t, 2), v(t, 2), v(p1, 2), v(p1, 2)))
            for (A, C, t) in prs:
                a("v_rcp_f32 %s, %s" % (v(t), v(t))); a("v_rcp_f32 %s, %s" % (v(t + 1), v(t + 1)))
            for (A, C, t) in prs: a("v_pk_mul_f32 %s, %s, %s" % (v(t, 2), v(A, 2), v(t, 2)))
            o = W + 8 + 4 * (gi & 1); gi += 1
            for i, (A, C, t) in enumerate(prs): a("v_cvt_pk_bf16_f32 %s, %s, %s" % (v(o + i), v(t), v(t + 1)))
            stg.put(ltb, half, o)
    stg.flush()

def q_epilogue(a, B, T, srd_out, vtok, sP):
    vm, vr_, cs = swapped_table_reads(a, T)
    P = T + 28
    W = P + 16
    pE = T + 2
    a("s_waitcnt lgkmcnt(0)")
    a("v_mov_b32 %s, %s" % (v(pE), fh(1e-6)))
    for ltb in range(4):
        p0, p1 = P + 4 * ltb, P + 4 * ltb + 2
        a("v_sub_f32 %s, 0, %s" % (v(p0), v(vm + ltb)))
        a("v_mov_b32 %s, %s" % (v(p1), v(vr_ + ltb)))
        a("v_mul_f32 %s, %s, %s" % (v(p1 + 1), fh(LOG2E), v(vr_ + ltb)))
    pend = Pending(a)
    gi = 0
    for ltb in range(4):
        p0, pR = P + 4 * ltb, P + 4 * ltb + 2
        for half in range(2):
            prs = [(B.A(ltb, 2 * half + i // 2) + 2 * (i % 2), cs + 4 * (2 * half + i // 2) + 2 * (i % 2), W + 2 * i) for i in range(4)]
            for (A, C, t) in prs: a("v_pk_fma_f32 %s, %s, %s, %s op_sel_hi:[1,0,1]" % (v(A, 2), v(C, 2), v(p0, 2), v(A, 2)))
            pend.flush()
            for (A, C, t) in prs: a("v_pk_mul_f32 %s, %s, %s op_sel:[0,1] op_sel_hi:[1,1]" % (v(t, 2), v(A, 2), v(pR, 2)))
            for (A, C, t) in prs: a("v_pk_fma_f32 %s, %s, %s, %s op_sel_hi:[1,0,0]" % (v(A, 2), v(A, 2), v(pR, 2), v(pE, 2)))
            for (A, C, t) in prs:
                a("v_exp_f32_e64 %s, %s clamp" % (v(t), v(t))); a("v_exp_f32_e64 %s, %s clamp" % (v(t + 1), v(t + 1)))
            for (A, C, t) in prs:
                a("v_max_f32 %s, %s, %s" % (v(A), v(pE), v(A))); a("v_max_f32 %s, %s, %s" % (v(A + 1), v(pE), v(A + 1)))
            for (A, C, t) in prs: a("v_pk_add_f32 %s, %s, %s" % (v(A, 2), v(A, 2), v(t, 2)))
            o = W + 8 + 4 * (gi & 1); gi += 1
            for i, (A, C, t) in enumerate(prs): a("v_cvt_pk_bf16_f32 %s, %s, %s" % (v(o + i), v(A), v(A + 1)))
            pend.put(o, vtok + ltb, srd_out, s(sP + half))
    pend.flush(nop=True)

def kv_epilogue(a, B, T, X):
    vb0, vb1, vc0, vc1 = X, X + 1, X + 2, X + 3
    m4, r4 = T, T + 16
    cs = X + 4
    a("s_lshl_b32 s4, %s, 8\ns_add_u32 s4, s4, 0x%x" % (s(S_WM), TAB_M))
    a("s_lshl_b32 s5, %s, 7\ns_xor_b32 s6, s5, 128\ns_add_u32 s5, s5, s4\ns_add_u32 s6, s6, s4" % s(S_WN))
    a("v_lshrrev_b32 %s, 4, v0" % v(cs))
    a("v_lshl_add_u32 %s, %s, 4, s5" % (v(vb0), v(cs)))
    a("v_lshl_add_u32 %s, %s, 4, s6" % (v(vb1), v(cs)))
    a("s_lshl_b32 s4, %s, 8\ns_add_u32 s4, s4, 0x%x" % (s(S_WN), TAB_C))
    a("s_lshl_b32 s5, %s, 7\ns_xor_b32 s6, s5, 128\ns_add_u32 s5, s5, s4\ns_add_u32 s6, s6, s4" % s(S_WM))
    a("v_and_b32 %s, 15, v0" % v(cs))
    a("v_lshl_add_u32 %s, %s, 2, s5" % (v(vc0), v(cs)))
    a("v_lshl_add_u32 %s, %s, 2, s6" % (v(vc1), v(cs)))
    for ltb in range(4):
        b = vb0 + (ltb >> 1)
        a("ds_read_b128 %s, %s offset:%d" % (v(m4 + 4 * ltb, 4), v(b), (ltb & 1) * 64))
        a("ds_read_b128 %s, %s offset:%d" % (v(r4 + 4 * ltb, 4), v(b), 512 + (ltb & 1) * 64))
    for lf in range(4):
        a("ds_read_b32 %s, %s offset:%d" % (v(cs + lf), v(vc0 + (lf >> 1)), (lf & 1) * 64))
    W = T + 32
    KO, VO = T + 40, T + 44
    pE = T + 48
    kvacc = X + 8
    a("v_mov_b32 %s, %s" % (v(pE), fh(1e-6)))
    a("v_mov_b32 %s, %s" % (v(pE + 1), fh(LOG2E)))
    a("s_waitcnt lgkmcnt(0)")
    for lf in range(4): a("v_sub_f32 %s, 0, %s" % (v(cs + lf), v(cs + lf)))
    for hd in range(2):
        for pr in range(2):
            for isv in range(2):
                lf = 2 * hd + isv
                csp = cs + (lf & ~1); sel = lf & 1
                prs = []
                for b2 in range(2):
                    ltb = 2 * pr + b2
                    for i in range(2):
                        prs.append((B.A(ltb, lf) + 2 * i, m4 + 4 * ltb + 2 * i, r4 + 4 * ltb + 2 * i, W + 2 * (2 * b2 + i)))
                for (A, M, Rr, t) in prs: a("v_pk_fma_f32 %s, %s, %s, %s op_sel:[0,%d,0] op_sel_hi:[1,%d,1]" % (v(A, 2), v(M, 2), v(csp, 2), v(A, 2), sel, sel))
                for (A, M, Rr, t) in prs: a("v_pk_mul_f32 %s, %s, %s" % (v(A, 2), v(A, 2), v(Rr, 2)))
                if not isv:
                    for (A, M, Rr, t) in prs: a("v_pk_mul_f32 %s, %s, %s op_sel:[0,1] op_sel_hi:[1,1]" % (v(t, 2), v(A, 2), v(pE, 2)))
                    for (A, M, Rr, t) in prs: a("v_pk_add_f32 %s, %s, %s op_sel_hi:[1,0]" % (v(A, 2), v(A, 2), v(pE, 2)))
                    for (A, M, Rr, t) in prs:
                        a("v_exp_f32_e64 %s, %s clamp" % (v(t), v(t))); a("v_exp_f32_e64 %s, %s clamp" % (v(t + 1), v(t + 1)))
                    for (A, M, Rr, t) in prs:
                        a("v_max_f32 %s, %s, %s" % (v(A), v(pE), v(A))); a("v_max_f32 %s, %s, %s" % (v(A + 1), v(pE), v(A + 1)))
                    for (A, M, Rr, t) in prs: a("v_pk_add_f32 %s, %s, %s" % (v(A, 2), v(A, 2), v(t, 2)))
                dst = VO if isv else KO
                for i, (A, M, Rr, t) in enumerate(prs): a("v_cvt_pk_bf16_f32 %s, %s, %s" % (v(dst + i), v(A), v(A + 1)))
            a("s_nop 1")
            kva = kvacc + 8 * hd
            a(mm(kva, KO, VO, pr == 0))
            a(mm(kva + 4, KO, B.ones, pr == 0))
    mfma_drain(a)
    lab1, lab2 = a.new("kvw"), a.new("kvd")
    a("s_lshl_b32 s4, %s, 12\ns_add_u32 s4, s4, 0x%x" % (s(S_WN), SCR))
    a("v_lshl_add_u32 %s, v0, 4, s4" % v(W))
    a("s_cmp_eq_u32 %s, 0\ns_cbranch_scc1 %s" % (s(S_WM), lab1))
    for i in range(4):
        a("ds_write_b128 %s, %s offset:%d" % (v(W), v(kvacc + 4 * i, 4), i * 1024))
    a("s_waitcnt lgkmcnt(0)")
    a("s_barrier")
    a("s_branch %s" % lab2)
    a.label(lab1)
    a("s_barrier")
    for i in range(4):
        a("ds_read_b128 %s, %s offset:%d" % (v(m4 + 4 * i, 4), v(W), i * 1024))
    a("s_sub_u32 s4, %s, 4\ns_lshl_b32 s4, s4, 2\ns_lshl_b32 s5, %s, 1\ns_add_u32 s4, s4, s5" % (s(S_CT), s(S_WN)))
    a("s_lshl_b32 s5, %s, 5\ns_add_u32 s4, s4, s5\ns_mul_i32 s4, s4, %d" % (s(S_RT), KVP_ST))
    a("v_and_b32 %s, 15, v0" % v(W))
    a("v_lshlrev_b32 %s, 6, %s" % (v(W), v(W)))
    a("v_lshrrev_b32 %s, 4, v0" % v(W + 1))
    a("v_lshl_add_u32 %s, %s, 4, %s" % (v(W), v(W + 1), v(W)))
    a("v_lshlrev_b32 %s, 4, %s" % (v(W + 1), v(W + 1)))
    a("s_waitcnt lgkmcnt(0)")
    for hd in range(2):
        for i in range(4):
            a("v_pk_add_f32 %s, %s, %s" % (v(kvacc + 8 * hd + 2 * i, 2), v(kvacc + 8 * hd + 2 * i, 2), v(m4 + 8 * (hd ^ 1) + 2 * i, 2)))
    for hd in range(2):
        a("s_add_u32 s5, s4, %d" % (hd * KVP_ST))
        a("buffer_store_dwordx4 %s, %s, %s, s5 offen%s" % (v(kvacc + 8 * hd, 4), v(W), s(SRD_B, 4), SC1))
    set_exec(a, 0x0001000100010001)
    for hd in range(2):
        a("s_add_u32 s5, s4, %d" % (hd * KVP_ST + 1024))
        a("buffer_store_dwordx4 %s, %s, %s, s5 offen%s" % (v(kvacc + 8 * hd + 4, 4), v(W + 1), s(SRD_B, 4), SC1))
    full_exec(a)
    a.label(lab2)
```

```python
import sys
sys.path.insert(0, "gen")
from g3_common import *
from g3_epi import *

KNAME = "parallel_sum__linear_attn_block__mixer_s_mlp__prompt_kernel"
s_row0, s_rs, s_ca, s_ldw, s_colb, s_A, s_B, s_xs, s_ws = [S_PP + i for i in range(9)]
VX, VW, VT = 8, 12, 16
sP, sB, sL = S_EP, S_EP + 2, S_EP + 3

def consumer_done(a, word, idx_code):
    lab = a.new("cd")
    a("s_waitcnt vmcnt(0)")
    a("s_mov_b64 exec, 1")
    a("v_mov_b32 v2, 0x%x\nv_mov_b32 v3, 1" % (LCNT + 4 * word))
    a("ds_add_rtn_u32 v4, v2, v3")
    a("s_waitcnt lgkmcnt(0)")
    a("v_readfirstlane_b32 s4, v4")
    a("s_mov_b64 exec, -1")
    a("s_cmp_eq_u32 s4, 3\ns_cbranch_scc0 %s" % lab)
    signal(a, idx_code)
    a.label(lab)

def only_w0(a, body):
    lab = a.new("w0")
    a("s_cmp_lg_u32 %s, 0\ns_cbranch_scc1 %s" % (s(S_PW), lab))
    body()
    a.label(lab)

def lanes_all(off_code, target):
    return off_code + "\nv_mov_b32 v3, %d" % target

def small_token_offsets(a, dst, rs_shift, lanefn):
    a("s_lshl_b32 s4, %s, 6\ns_lshl_b32 s5, %s, 5\ns_add_u32 s4, s4, s5" % (s(S_RT), s(S_WM)))
    a("v_and_b32 %s, 15, v0" % v(dst))
    a("v_add_u32 %s, s4, %s" % (v(dst), v(dst)))
    lanefn(dst + 1)
    a("v_lshl_add_u32 %s, %s, %d, %s" % (v(dst), v(dst), rs_shift, v(dst + 1)))
    a("v_add_u32 %s, %d, %s" % (v(dst + 1), 16 << rs_shift, v(dst)))

def small_mfmas(B):
    def f(set_, first):
        out = []
        for k2 in range(2):
            for tb in range(2):
                for ff in range(2):
                    out.append(mm(B.A(tb, ff), B.wf[set_] + k2 * 8 + ff * 4, B.xf[set_] + k2 * 8 + tb * 4, first and k2 == 0))
        return out
    return f

def c_p1(a):
    R = Regs(8)
    B = Big(R, True, True)
    vtok = R.alloc(4)
    X = R.alloc(24, 4)
    SW = R.alloc(4); SR = R.alloc(1); RD = R.alloc(16, 4)
    T = B.xf[0]
    B.setup(a, 2)
    lab = a.new("lz")
    a("s_cmp_lg_u32 s3, 0\ns_cbranch_scc1 %s" % lab)
    a("v_lshlrev_b32 v2, 2, v0\nv_add_u32 v2, 0x%x, v2\nv_mov_b32 v3, 0" % LCNT)
    set_exec(a, 0xffff)
    a("ds_write_b32 v2, v3")
    full_exec(a)
    a.label(lab)
    a("s_waitcnt lgkmcnt(0)")
    lab = a.new("gz")
    a("s_or_b32 s4, s2, s3\ns_cmp_lg_u32 s4, 0\ns_cbranch_scc1 %s" % lab)
    cnt_srd(a)
    a("v_lshlrev_b32 v2, 8, v0\nv_mov_b32 v3, 0")
    a("buffer_store_dword v3, v2, %s, 0 offen sc1" % s(SRD_D, 4))
    srd(a, SRD_C, P_DBG, 0, 256)
    a("s_waitcnt vmcnt(0)")
    a("v_mov_b32 v2, 0\nv_mov_b32 v3, 1")
    a("s_mov_b64 exec, 1")
    a("buffer_store_dword v3, v2, %s, 0 offen sc1" % s(SRD_C, 4))
    a("s_mov_b64 exec, -1")
    a.label(lab)
    srd(a, SRD_A, P_WS, WS_PQ, SZ_ACT)
    srd(a, SRD_B, P_WS, WS_KVP, 16 * 32 * KVP_ST)
    srd(a, SRD_C, P_WS, WS_XST, S * 8)
    srd(a, SRD_D, P_WS, WS_H, SZ_PAD)
    a("s_cmp_ge_u32 %s, 4\ns_cbranch_scc0 c1_sw" % s(S_CT))
    a("s_cmp_ge_u32 %s, 12\ns_cbranch_scc1 c1_sw" % s(S_CT))
    mainloop(a, 8, B.reads, lambda st, first: B.mfmas(st, first, False), 2)
    mfma_drain(a)
    stats_from_gram(a, B, T, False)
    colsum_to_table(a, B, T + 12)
    a("s_waitcnt lgkmcnt(0)\ns_barrier")
    kv_epilogue(a, B, T, X)
    a("s_branch c1_done")
    a.label("c1_sw")
    mainloop(a, 8, B.reads, lambda st, first: B.mfmas(st, first, True), 2)
    mfma_drain(a)
    stats_from_gram(a, B, T, True)
    colsum_to_table(a, B, T + 12)
    a("s_cmp_ge_u32 %s, 12\ns_cbranch_scc1 c1_h" % s(S_CT))
    big_token_offsets(a, vtok, rs_shift=5, lanefn=lane_pair(65536)(a))
    a("s_lshl_b32 s4, %s, 3\ns_lshl_b32 s5, %s, 2\ns_add_u32 s4, s4, s5\ns_lshl_b32 %s, s4, 16" % (s(S_CT), s(S_WN), s(sB)))
    pair_soffsets(a, sP, sB, 16)
    a("s_waitcnt lgkmcnt(0)\ns_barrier")
    q_epilogue(a, B, T, SRD_A, vtok, sP)
    a("s_branch c1_done")
    a.label("c1_h")
    a("s_mov_b32 %s, %d" % (s(sL), LDA))
    Stager.setup(a, SW, SR, vtok, rs_sgpr=sL)
    a("s_sub_u32 s4, %s, 12\ns_lshl_b32 s4, s4, 8\ns_lshl_b32 s5, %s, 7\ns_add_u32 %s, s4, s5\ns_add_u32 %s, %s, %d" % (s(S_CT), s(S_WN), s(sP), s(sP + 1), s(sP), 8 * LDA))
    a("s_waitcnt lgkmcnt(0)\ns_barrier")
    gelu_epilogue(a, B, T, True, Stager(a, SW, SR, vtok, SRD_D, sP, sP + 1, RD))
    a.label("c1_done")
    stamp(a, 5)
    consumer_done(a, 0, "s_add_u32 s4, %s, %d" % (s(S_RT), CNT_H))
    stamp(a, 6)
    return R.hi

def c_p2(a):
    tile_ids_small(a, 4)
    R = Regs(8)
    B = Small(R)
    vtok = R.alloc(2); vtk8 = R.alloc(2)
    XR = R.alloc(4, 4)
    L = R.alloc(12, 4)
    small_token_offsets(a, vtok, 10, lane_pair(32)(a))
    sF = S_EP
    a("s_lshl_b32 s4, %s, 7\ns_lshl_b32 s5, %s, 6\ns_add_u32 %s, s4, s5" % (s(S_CT), s(S_WN), s(sF)))
    a("s_lshl_b32 s4, %s, 6\ns_lshl_b32 s5, %s, 5\ns_add_u32 s4, s4, s5" % (s(S_RT), s(S_WM)))
    a("v_and_b32 %s, 15, v0" % v(vtk8))
    a("v_add_u32 %s, s4, %s" % (v(vtk8), v(vtk8)))
    a("v_lshlrev_b32 %s, 3, %s" % (v(vtk8), v(vtk8)))
    srd(a, SRD_A, P_X, 0, SZ_ACT)
    srd(a, SRD_B, P_WS, WS_XST, S * 8)
    for tb in range(2):
        a("buffer_load_dwordx4 %s, %s, %s, %s offen" % (v(L + 4 * tb, 4), v(vtok + tb), s(SRD_A, 4), s(sF)))
    B.setup(a, 2)
    srd(a, SRD_C, P_WS, WS_X1, SZ_PAD)
    a("s_barrier")
    stamp(a, 7)
    for tb in range(2):
        a("buffer_load_dwordx2 %s, %s, %s, 0 offen offset:%d sc1" % (v(L + 8 + 2 * tb, 2), v(vtk8), s(SRD_B, 4), tb * 128))
    mainloop(a, 4, B.reads, small_mfmas(B), 8)
    srd(a, SRD_D, P_WS, WS_X1ST, 32 * 8 * 512)
    a("s_waitcnt vmcnt(0)")
    for tb in range(2): swap_pair(a, L + 4 * tb)
    mfma_drain(a)
    T = B.xf[0]
    for tb in range(2):
        pm = L + 8 + 2 * tb
        a("v_mul_f32 %s, %s, %s" % (v(pm), v(pm), v(pm + 1)))
        a("v_sub_f32 %s, 0, %s" % (v(pm), v(pm)))
        for f in range(2):
            A = B.A(tb, f); src = L + 4 * tb + 2 * f
            unpack_bf16(a, XR, XR + 1, src); unpack_bf16(a, XR + 2, XR + 3, src + 1)
            for i in range(2):
                a("v_pk_fma_f32 %s, %s, %s, %s op_sel:[0,1,0] op_sel_hi:[1,1,0]" % (v(XR + 2 * i, 2), v(XR + 2 * i, 2), v(pm, 2), v(pm, 2)))
            for i in range(2):
                a("v_pk_add_f32 %s, %s, %s" % (v(A + 2 * i, 2), v(A + 2 * i, 2), v(XR + 2 * i, 2)))
    vw, vs = T + 20, T + 21
    a("s_lshl_b32 s5, %s, 2" % s(S_WN))
    a("v_lshrrev_b32 %s, 5, v0\nv_add_u32 %s, s5, %s" % (v(vw), v(vw), v(vw)))
    a("v_and_b32 %s, 7, v0\nv_xor_b32 %s, %s, %s\nv_lshlrev_b32 %s, 4, %s" % (v(vs), v(vw), v(vw), v(vs), v(vw), v(vw)))
    a("v_and_b32 %s, 15, v0\nv_lshl_add_u32 %s, %s, 7, %s" % (v(vs), v(vw), v(vs), v(vw)))
    a("v_bfe_u32 %s, v0, 4, 1\nv_lshl_add_u32 %s, %s, 3, %s" % (v(vs), v(vw), v(vs), v(vw)))
    a("s_lshl_b32 s4, %s, 12\ns_add_u32 s4, s4, 0x%x" % (s(S_WM), STG))
    a("v_add_u32 %s, s4, %s" % (v(vw), v(vw)))
    a("v_xor_b32 %s, 32, %s" % (v(vw + 2), v(vw)))
    for tb in range(2):
        o = T + 4 * tb
        for f in range(2):
            A = B.A(tb, f)
            a("v_cvt_pk_bf16_f32 %s, %s, %s" % (v(o + 2 * f), v(A), v(A + 1)))
            a("v_cvt_pk_bf16_f32 %s, %s, %s" % (v(o + 2 * f + 1), v(A + 2), v(A + 3)))
            a("ds_write_b64 %s, %s offset:%d" % (v(vw + 2 * f), v(o + 2 * f, 2), tb * 2048))
    for tb in range(2):
        st = T + 8 + 2 * tb
        p, q_ = T + 12, T + 14
        A0, A1 = B.A(tb, 0), B.A(tb, 1)
        a("v_pk_add_f32 %s, %s, %s" % (v(p, 2), v(A0, 2), v(A0 + 2, 2)))
        a("v_pk_mul_f32 %s, %s, %s" % (v(q_, 2), v(A0, 2), v(A0, 2)))
        a("v_pk_add_f32 %s, %s, %s" % (v(p, 2), v(p, 2), v(A1, 2)))
        a("v_pk_fma_f32 %s, %s, %s, %s" % (v(q_, 2), v(A0 + 2, 2), v(A0 + 2, 2), v(q_, 2)))
        a("v_pk_add_f32 %s, %s, %s" % (v(p, 2), v(p, 2), v(A1 + 2, 2)))
        a("v_pk_fma_f32 %s, %s, %s, %s" % (v(q_, 2), v(A1, 2), v(A1, 2), v(q_, 2)))
        a("v_pk_fma_f32 %s, %s, %s, %s" % (v(q_, 2), v(A1 + 2, 2), v(A1 + 2, 2), v(q_, 2)))
        a("v_add_f32 %s, %s, %s" % (v(st), v(p), v(p + 1)))
        a("v_add_f32 %s, %s, %s" % (v(st + 1), v(q_), v(q_ + 1)))
        xlane_sum_q(a, st, T + 16); xlane_sum_q(a, st + 1, T + 17)
    a("s_lshl_b32 s4, %s, 9\ns_lshl_b32 s5, %s, 3\ns_add_u32 s4, s4, s5\ns_add_u32 s4, s4, 0x%x" % (s(S_WM), s(S_WN), STG + 8192))
    a("v_and_b32 %s, 15, v0\nv_lshl_add_u32 %s, %s, 4, s4" % (v(vs), v(vs), v(vs)))
    set_exec(a, 0xffff)
    for tb in range(2):
        a("ds_write_b64 %s, %s offset:%d" % (v(vs), v(T + 8 + 2 * tb, 2), tb * 256))
    full_exec(a)
    a("v_lshrrev_b32 %s, 3, v0\nv_and_b32 %s, 7, v0\nv_xor_b32 %s, %s, %s\nv_lshlrev_b32 %s, 4, %s" % (v(T), v(T + 1), v(T + 2), v(T), v(T + 1), v(T + 2), v(T + 2)))
    a("v_lshl_add_u32 %s, %s, 7, %s" % (v(T + 2), v(T), v(T + 2)))
    a("s_lshl_b32 s4, s3, 11\ns_add_u32 s4, s4, 0x%x" % STG)
    a("v_add_u32 %s, s4, %s" % (v(T + 2), v(T + 2)))
    a("s_lshl_b32 s4, %s, 6\ns_lshl_b32 s5, s3, 4\ns_add_u32 s4, s4, s5" % s(S_RT))
    a("s_mov_b32 s5, %d" % LDA)
    a("v_add_u32 %s, s4, %s\nv_mul_u32_u24 %s, s5, %s\nv_lshl_add_u32 %s, %s, 4, %s" % (v(T), v(T), v(T), v(T), v(T), v(T + 1), v(T)))
    a("s_lshl_b32 %s, %s, 7\ns_add_u32 %s, %s, %d" % (s(sF), s(S_CT), s(sF + 1), s(sF), 8 * LDA))
    a("v_lshlrev_b32 %s, 4, v0\nv_add_u32 %s, 0x%x, %s" % (v(T + 3), v(T + 3), STG + 8192, v(T + 3)))
    a("s_waitcnt lgkmcnt(0)")
    a("s_barrier")
    for i in range(2):
        a("ds_read_b128 %s, %s offset:%d" % (v(T + 4 + 4 * i, 4), v(T + 2), i * 1024))
    a("ds_read_b128 %s, %s" % (v(T + 12, 4), v(T + 3)))
    a("s_lshl_b32 s4, %s, 3\ns_add_u32 s4, s4, %s\ns_lshl_b32 s4, s4, 9" % (s(S_RT), s(S_CT)))
    a("v_lshlrev_b32 %s, 3, v0" % v(T + 3))
    a("s_waitcnt lgkmcnt(0)")
    for i in range(2):
        a("buffer_store_dwordx4 %s, %s, %s, %s offen sc1" % (v(T + 4 + 4 * i, 4), v(T), s(SRD_C, 4), s(sF + i)))
    lab = a.new("nst")
    a("s_cmp_lg_u32 s3, 0\ns_cbranch_scc1 %s" % lab)
    a("v_pk_add_f32 %s, %s, %s" % (v(T + 12, 2), v(T + 12, 2), v(T + 14, 2)))
    a("buffer_store_dwordx2 %s, %s, %s, s4 offen sc1" % (v(T + 12, 2), v(T + 3), s(SRD_D, 4)))
    a.label(lab)
    stamp(a, 11)
    consumer_done(a, 1, "s_lshr_b32 s4, %s, 1\ns_add_u32 s4, s4, %d" % (s(S_RT), CNT_X1))
    stamp(a, 12)
    a("s_barrier")
    return R.hi

def c_p3(a):
    tile_ids_big(a, "2x16", False)
    a("s_cmp_eq_u32 %s, 15\ns_cbranch_scc1 c4_start" % s(S_CT))
    R = Regs(8)
    B = Big(R, False, True)
    vtok = R.alloc(4)
    X = R.alloc(64, 4)
    VR = R.alloc(8)
    SW = R.alloc(4); SR = R.alloc(1)
    RD = X + 16
    T = B.xf[0]
    B.setup(a, 2)
    a("s_cmp_ge_u32 %s, 11\ns_cbranch_scc1 c3_wo" % s(S_CT))
    a("s_lshl_b32 s4, %s, 1\ns_add_u32 s4, s4, %s\ns_lshl_b32 s4, s4, 12\ns_lshl_b32 s5, %s, 8\ns_add_u32 s4, s4, s5" % (s(S_RT), s(S_WM), s(S_WN)))
    a("v_and_b32 %s, 31, v0\nv_lshlrev_b32 %s, 3, %s\nv_lshrrev_b32 v3, 5, v0\nv_lshl_add_u32 %s, v3, 11, %s\nv_add_u32 %s, s4, %s" % ((v(VR),) * 7))
    srd(a, SRD_A, P_WS, WS_X1ST, 32 * 8 * 512)
    srd(a, SRD_D, P_WS, WS_G, S * LDG)
    a("s_mov_b32 %s, %d" % (s(sL), LDG))
    Stager.setup(a, SW, SR, vtok, rs_sgpr=sL)
    a("s_lshl_b32 s4, %s, 8\ns_lshl_b32 s5, %s, 7\ns_add_u32 %s, s4, s5\ns_add_u32 %s, %s, %d" % (s(S_CT), s(S_WN), s(sP), s(sP + 1), s(sP), 8 * LDG))
    a("s_barrier")
    stamp(a, 13)
    for p in range(4):
        a("buffer_load_dwordx2 %s, %s, %s, 0 offen offset:%d sc1" % (v(X + 2 * p, 2), v(VR), s(SRD_A, 4), p * 512))
    mainloop(a, 8, B.reads, lambda st, first: B.mfmas(st, first, True), 14)
    a("s_waitcnt vmcnt(0)")
    for (x, y) in ((0, 2), (1, 3), (0, 1)):
        a("v_pk_add_f32 %s, %s, %s" % (v(X + 2 * x, 2), v(X + 2 * x, 2), v(X + 2 * y, 2)))
    for i in range(2): a("v_mov_b32 %s, %s" % (v(X + 4 + i), v(X + i)))
    a("s_nop 1")
    for i in range(2): a("v_permlane32_swap_b32 %s, %s" % (v(X + 4 + i), v(X + i)))
    a("s_nop 1")
    a("v_pk_add_f32 %s, %s, %s" % (v(X, 2), v(X, 2), v(X + 4, 2)))
    a("v_mul_f32 %s, %s, %s" % (v(X), fh(1.0 / D), v(X)))
    a("v_mul_f32 %s, %s, %s" % (v(X + 1), fh(1.0 / D), v(X + 1)))
    a("v_fma_f32 %s, -%s, %s, %s" % (v(X + 1), v(X), v(X), v(X + 1)))
    a("v_add_f32 %s, %s, %s" % (v(X + 1), fh(EPS), v(X + 1)))
    a("v_rsq_f32 %s, %s" % (v(X + 1), v(X + 1)))
    a("s_lshl_b32 s4, %s, 8\ns_lshl_b32 s5, %s, 7\ns_add_u32 s4, s4, s5\ns_add_u32 s4, s4, 0x%x" % (s(S_WM), s(S_WN), TAB_M))
    a("v_and_b32 v2, 31, v0\nv_lshl_add_u32 v2, v2, 2, s4")
    a("ds_write_b32 v2, %s" % v(X))
    a("ds_write_b32 v2, %s offset:512" % v(X + 1))
    colsum_to_table(a, B, T + 12)
    a("s_waitcnt lgkmcnt(0)\ns_barrier")
    gelu_epilogue(a, B, T, False, Stager(a, SW, SR, vtok, SRD_D, sP, sP + 1, RD))
    a("s_branch c3_done")
    a.label("c3_wo")
    a("s_mov_b32 %s, %d" % (s(sL), LDA))
    Stager.setup(a, SW, SR, vtok, rs_sgpr=sL)
    a("s_sub_u32 s4, %s, 11\ns_lshl_b32 s4, s4, 8\ns_lshl_b32 s5, %s, 7\ns_add_u32 %s, s4, s5\ns_add_u32 %s, %s, %d" % (s(S_CT), s(S_WN), s(sP), s(sP + 1), s(sP), 8 * LDA))
    srd(a, SRD_C, P_WS, WS_BASE, SZ_PAD)
    a("s_lshl_b32 s4, %s, 3\ns_lshl_b32 s5, %s, 2\ns_add_u32 s4, s4, s5" % (s(S_WN), s(S_WM)))
    a("v_lshrrev_b32 v2, 5, v0\nv_add_u32 v2, s4, v2\nv_and_b32 v3, 15, v0\nv_xor_b32 v2, v2, v3\nv_lshlrev_b32 v2, 4, v2\nv_lshl_add_u32 v2, v3, 8, v2")
    a("v_bfe_u32 v3, v0, 4, 1\nv_lshl_add_u32 v2, v3, 3, v2")
    a("s_lshl_b32 s4, %s, 15\ns_lshl_b32 s5, %s, 13\ns_xor_b32 s6, s5, 0x2000\ns_add_u32 s5, s5, s4\ns_add_u32 s6, s6, s4" % (s(S_WM), s(S_WN)))
    for lf in range(4):
        if lf: a("v_xor_b32 v3, %d, v2" % (lf * 32))
        a("v_add_u32 %s, s5, %s" % (v(VR + lf), "v3" if lf else "v2"))
        a("v_add_u32 %s, s6, %s" % (v(VR + 4 + lf), "v3" if lf else "v2"))
    a("s_barrier")
    stamp(a, 13)
    B.use_cs = False
    mainloop(a, 8, B.reads, lambda st, first: B.mfmas(st, first, True), 14)
    B.use_cs = True
    a("s_barrier")
    for src in range(2):
        for ltb in range(4):
            for lf in range(4):
                a("ds_read_b64 %s, %s offset:%d" % (v(X + 32 * src + (ltb * 4 + lf) * 2, 2), v(VR + 4 * (ltb >> 1) + lf), (ltb & 1) * 4096))
            if ltb & 1: a("s_waitcnt lgkmcnt(0)")
        if src == 0:
            for i in range(8): a("v_add_u32 %s, 0x10000, %s" % (v(VR + i), v(VR + i)))
    tmp = T
    stg = Stager(a, SW, SR, vtok, SRD_C, sP, sP + 1, T + 32)
    gi = 0
    for ltb in range(4):
        for h in range(2):
            for f in range(2):
                i = (ltb * 4 + 2 * h + f) * 2; t = tmp + 8 * f
                unpack_bf16(a, t, t + 1, X + i); unpack_bf16(a, t + 2, t + 3, X + i + 1)
                unpack_bf16(a, t + 4, t + 5, X + 32 + i); unpack_bf16(a, t + 6, t + 7, X + 32 + i + 1)
            stg.flush()
            for f in range(2):
                t = tmp + 8 * f
                for k in range(2):
                    a("v_pk_add_f32 %s, %s, %s" % (v(t + 2 * k, 2), v(t + 2 * k, 2), v(t + 4 + 2 * k, 2)))
            for f in range(2):
                A = B.A(ltb, 2 * h + f); t = tmp + 8 * f
                for k in range(2):
                    a("v_pk_add_f32 %s, %s, %s" % (v(A + 2 * k, 2), v(A + 2 * k, 2), v(t + 2 * k, 2)))
            o = tmp + 16 + 4 * (gi & 1); gi += 1
            for f in range(2):
                A = B.A(ltb, 2 * h + f)
                a("v_cvt_pk_bf16_f32 %s, %s, %s" % (v(o + 2 * f), v(A), v(A + 1)))
                a("v_cvt_pk_bf16_f32 %s, %s, %s" % (v(o + 2 * f + 1), v(A + 2), v(A + 3)))
            stg.put(ltb, h, o)
    stg.flush()
    a.label("c3_done")
    stamp(a, 17)
    consumer_done(a, 2, "s_add_u32 s4, %s, %d" % (s(S_RT), CNT_G))
    stamp(a, 18)
    return R.hi

def c_p4(a):
    a.label("c4_start")
    tile_ids_small(a, 11)
    R = Regs(8)
    B = Small(R)
    vtok = R.alloc(2); vtb = R.alloc(2); L = R.alloc(8, 4); Xr = R.alloc(4, 4)
    small_token_offsets(a, vtok, 10, lane_pair(32)(a))
    a("s_lshl_b32 s4, %s, 6\ns_lshl_b32 s5, %s, 5\ns_add_u32 s4, s4, s5" % (s(S_RT), s(S_WM)))
    a("v_and_b32 v2, 15, v0\nv_add_u32 v2, s4, v2\ns_mov_b32 s5, %d\nv_mad_u32_u24 %s, v2, s5, %s" % (LDA - 1024, v(vtb), v(vtok)))
    a("v_add_u32 %s, %d, %s" % (v(vtb + 1), 16 * LDA, v(vtb)))
    sF = S_EP
    a("s_lshl_b32 s4, %s, 7\ns_lshl_b32 s5, %s, 6\ns_add_u32 %s, s4, s5" % (s(S_CT), s(S_WN), s(sF)))
    srd(a, SRD_A, P_WS, WS_BASE, SZ_PAD)
    srd(a, SRD_C, P_OUT, 0, SZ_ACT)
    B.setup(a, 2)
    a("s_barrier")
    stamp(a, 19)
    for tb in range(2):
        a("buffer_load_dwordx4 %s, %s, %s, %s offen sc1" % (v(L + 4 * tb, 4), v(vtb + tb), s(SRD_A, 4), s(sF)))
    mainloop(a, 11, B.reads, small_mfmas(B), 20, last_barrier=False)
    a("s_waitcnt vmcnt(0)")
    for tb in range(2): swap_pair(a, L + 4 * tb)
    mfma_drain(a)
    T = B.xf[0]
    for tb in range(2):
        for f in range(2):
            A = B.A(tb, f); src = L + 4 * tb + 2 * f
            unpack_bf16(a, Xr, Xr + 1, src); unpack_bf16(a, Xr + 2, Xr + 3, src + 1)
            for i in range(2):
                a("v_pk_add_f32 %s, %s, %s" % (v(A + 2 * i, 2), v(A + 2 * i, 2), v(Xr + 2 * i, 2)))
    for tb in range(2):
        o = T + 4 * tb
        for f in range(2):
            A = B.A(tb, f)
            a("v_cvt_pk_bf16_f32 %s, %s, %s" % (v(o + 2 * f), v(A), v(A + 1)))
            a("v_cvt_pk_bf16_f32 %s, %s, %s" % (v(o + 2 * f + 1), v(A + 2), v(A + 3)))
    a("s_nop 1")
    for tb in range(2):
        swap_pair(a, T + 4 * tb)
        a("buffer_store_dwordx4 %s, %s, %s, %s offen" % (v(T + 4 * tb, 4), v(vtok + tb), s(SRD_C, 4), s(sF)))
    stamp(a, 23)
    if OPT.prof: a("s_waitcnt vmcnt(0)")
    endk(a)
    return R.hi

def std_x(a, nst, rot):
    def f(st):
        if rot:
            stage_index(a, st, nst)
            a("s_mul_i32 %s, %s, %s" % (s(S_XO), s(S_G), s(s_xs)))
        else:
            a("s_mul_i32 %s, %s, %d" % (s(S_XO), s(s_xs), st))
        return [VX + j for j in range(4)], s(S_XO)
    return f
def std_w(a, nst, rot):
    def f(st):
        if rot: a("s_mul_i32 %s, %s, %s" % (s(S_WO), s(S_G), s(s_ws)))
        else:   a("s_mul_i32 %s, %s, %d" % (s(S_WO), s(s_ws), st))
        return [VW + j for j in range(4)], s(S_WO)
    return f

def w4_setup(a):
    a("s_lshr_b32 s4, s2, 3\ns_lshr_b32 s4, s4, 2\ns_lshl_b32 %s, s4, 7" % s(s_colb))
    small_addr_w(a, VW, 2, 1024, s_colb)
    srd(a, SRD_W, P_W4, 0, F * D * 2)
def w4_prep(a):
    def f(st):
        for j in range(4): a("v_add_u32 %s, 0x%x, %s" % (v(VT + j), st * 131072, v(VW + j)))
        return [VT + j for j in range(4)], "0"
    return f

def p_all(a):
    P = Prod(a)
    a("s_sub_u32 %s, s3, 4" % s(S_PW))
    a("s_lshl_b32 %s, %s, 12" % (s(S_M0B), s(S_PW)))
    a("s_lshl_b32 %s, %s, 7" % (s(s_row0), s(S_RT)))
    a("s_mov_b32 %s, 1024\ns_mov_b32 %s, 32\ns_mov_b32 %s, 128" % (s(s_rs), s(s_ca), s(s_xs)))
    a("s_mov_b32 %s, 3072\ns_mov_b32 %s, 64\ns_mov_b32 %s, 32\ns_lshl_b32 %s, %s, 8" % (s(s_ldw), s(s_A), s(s_B), s(s_colb), s(S_CT)))
    l1, l2, l3 = a.new("p1k"), a.new("p1g"), a.new("p1h")
    a("s_cmp_lt_u32 %s, 4\ns_cbranch_scc1 %s" % (s(S_CT), l2))
    a("s_cmp_lt_u32 %s, 12\ns_cbranch_scc1 %s" % (s(S_CT), l1))
    a("s_mov_b32 %s, 1024\ns_sub_u32 %s, %s, 12\ns_lshl_b32 %s, %s, 8" % (s(s_ldw), s(s_colb), s(S_CT), s(s_colb), s(s_colb)))
    a("s_branch %s" % l2)
    a.label(l1)
    a("s_mov_b32 %s, 32\ns_mov_b32 %s, 1024\ns_sub_u32 %s, %s, 4\ns_lshl_b32 %s, %s, 7\ns_add_u32 %s, %s, 1024" % (s(s_A), s(s_B), s(s_colb), s(S_CT), s(s_colb), s(s_colb), s(s_colb), s(s_colb)))
    a.label(l2)
    big_addr_x(a, VX, 2, s_row0, s_rs, s_ca)
    big_addr_w(a, VW, 2, s_ldw, s_colb, s_A, s_B)
    a("s_lshl_b32 %s, %s, 6" % (s(s_ws), s(s_ldw)))
    a("s_waitcnt lgkmcnt(0)")
    srd(a, SRD_X, P_X, 0, SZ_ACT)
    srd(a, SRD_W, P_WQKV, 0, D * 3 * D * 2)
    a("s_cmp_lt_u32 %s, 12\ns_cbranch_scc1 %s" % (s(S_CT), l3))
    srd(a, SRD_W, P_W1, 0, D * D * 2)
    a.label(l3)
    stamp(a, 2)
    VFLAG = 44
    def hook1(ev, st):
        if ev == "issued" and st == 7:
            if OPT.prefetch:
                srd(a, SRD_A, P_W2, 0, D * D * 2)
                srd(a, SRD_B, P_WO, 0, D * D * 2)
                srd(a, SRD_C, P_W3, 0, D * F * 2)
                srd(a, SRD_D, P_W4, 0, F * D * 2)
                a("s_lshl_b32 s4, s2, 2\ns_add_u32 s4, s4, %s\ns_lshl_b32 s4, s4, 10" % s(S_PW))
                a("v_lshl_add_u32 v16, v0, 4, s4")
                a("v_add_u32 v17, 0x%x, v16" % (1024 * 1024))
                a("v_add_u32 v18, 0x%x, v16" % ((-512 * 1024) & 0xffffffff))
                for (d, adr, r) in ((20, 16, SRD_A), (24, 18, SRD_B), (28, 16, SRD_C), (32, 17, SRD_C), (36, 16, SRD_D), (40, 17, SRD_D)):
                    a("buffer_load_dwordx4 %s, %s, %s, 0 offen" % (v(d, 4), v(adr), s(r, 4)))
                P.add("pf", 6)
            srd(a, SRD_A, P_DBG, 0, 256)
            a("v_mov_b32 v2, 0")
            a("buffer_load_dword %s, v2, %s, 0 offen sc1" % (v(VFLAG), s(SRD_A, 4)))
            P.add("flag", 1)
    producer_phase(P, 8, std_x(a, 8, OPT.rot1), std_w(a, 8, OPT.rot1), 0, OPT.depth, 3, hook=hook1)
    a("s_barrier")
    P.wait(["flag"])
    lab = a.new("ini")
    a("v_readfirstlane_b32 s4, %s\ns_cmp_lg_u32 s4, 0\ns_cbranch_scc1 %s" % (v(VFLAG), lab))
    poll(a, "v_mov_b32 v2, 0\nv_mov_b32 v3, 1", srd_code=lambda: srd(a, SRD_D, P_DBG, 0, 256))
    a.label(lab)
    a("s_barrier")
    a("s_mov_b32 %s, %s" % (s(S_T0 + 8), s(S_CT)))
    tile_ids_small(a, 4)
    a("s_lshl_b32 %s, %s, 7" % (s(s_colb), s(S_CT)))
    small_addr_w(a, VW, 2, 1024, s_colb)
    srd(a, SRD_W, P_W2, 0, D * D * 2)
    for st in range(4):
        a("s_mov_b32 %s, %d" % (s(S_WO), st * 131072))
        P.part(st, "w", [VW + j for j in range(4)], s(S_WO), SRD_W)
    a("s_lshl_b32 %s, %s, 6" % (s(s_row0), s(S_RT)))
    small_addr_x(a, VX, 2, s_row0, LDA)
    srd(a, SRD_X, P_WS, WS_H, SZ_PAD)
    lab = a.new("nok1")
    a("s_cmp_lt_u32 %s, 4\ns_cbranch_scc1 %s\ns_cmp_ge_u32 %s, 12\ns_cbranch_scc1 %s" % (s(S_T0 + 8), lab, s(S_T0 + 8), lab))
    a("s_barrier")
    a.label(lab)
    stamp(a, 5)
    def poll_h():
        a("s_lshr_b32 s6, %s, 1" % s(S_RT))
        a("s_add_u32 s5, s6, 1\ns_min_u32 s5, s5, 15")
        a("s_sub_u32 s7, s6, 1\ns_max_i32 s7, s7, 0")
        a("s_bitcmp1_b32 %s, 0\ns_cselect_b32 s5, s5, s7" % s(S_RT))
        a("s_lshl_b32 %s, s6, 8\ns_lshl_b32 %s, s5, 8" % (s(S_SY + 1), s(S_SY + 2)))
        poll(a, "v_mov_b32 v2, %s\nv_mov_b32 v3, %s\nv_cmp_eq_u32 vcc, 1, v0\ns_nop 1\nv_cndmask_b32 v2, v2, v3, vcc\nv_add_u32 v2, %d, v2\nv_mov_b32 v3, 16" % (s(S_SY + 1), s(S_SY + 2), CNT_H * 256))
    only_w0(a, poll_h)
    a("s_barrier")
    stamp(a, 7)
    pos = [-LDA, LDA + 256, -2 * LDA + 512, 2 * LDA + 768]
    def x2(st):
        for j in range(4): a("v_add_u32 %s, 0x%x, %s" % (v(VT + j), pos[st] & 0xffffffff, v(VX + j)))
        return [VT + j for j in range(4)], "0"
    KV, Z, PQ = 24, 40, 56
    vkv, vz, vpq, vl, VH = 20, 21, 22, 23, 44
    def hook2(ev, st):
        if ev == "issued" and st == 3:
            cnt_srd(a)
            a("v_and_b32 v2, 15, v0\nv_lshlrev_b32 v2, 8, v2")
            a("buffer_load_dword %s, v2, %s, 0 offen offset:%d sc1" % (v(100), s(SRD_D, 4), 0))
            P.add("hall", 1)
    producer_phase(P, 4, x2, None, 4, 4, 8, xsc=SC1, hook=hook2)
    a("s_barrier")
    stamp(a, 10)
    a("s_barrier")
    P.wait(["hall"])
    lab = a.new("hall")
    a("v_cmp_gt_u32 vcc, 16, v100\ns_nop 1\ns_cbranch_vccz %s" % lab)
    poll(a, "v_and_b32 v2, 15, v0\nv_lshlrev_b32 v2, 8, v2\nv_mov_b32 v3, 16")
    a.label(lab)
    srd(a, SRD_A, P_WS, WS_KVP, 16 * 32 * KVP_ST)
    srd(a, SRD_B, P_WS, WS_PQ, SZ_ACT)
    srd(a, SRD_C, P_WS, WS_O, SZ_ACT)
    a("s_and_b32 s6, s2, 31")
    a("s_lshl_b32 s7, %s, 7\ns_add_u32 s7, s7, s6\ns_mul_i32 %s, s7, %d" % (s(S_PW), s(S_SY + 1), KVP_ST))
    a("v_and_b32 v2, 15, v0\nv_lshrrev_b32 v3, 4, v0")
    a("v_lshlrev_b32 %s, 6, v2" % v(vkv))
    a("v_lshl_add_u32 %s, v3, 4, %s" % (v(vkv), v(vkv)))
    a("v_bfe_u32 v4, v0, 2, 2\nv_mul_u32_u24 v4, %d, v4\nv_and_b32 v5, 3, v0\nv_lshl_add_u32 %s, v5, 4, v4\nv_add_u32 %s, 1024, %s" % (32 * KVP_ST, v(vz), v(vz), v(vz)))
    a("s_lshr_b32 s4, s2, 5\ns_lshl_b32 s4, s4, 8\ns_lshl_b32 s5, %s, 6\ns_add_u32 s4, s4, s5" % s(S_PW))
    a("v_add_u32 v2, s4, v2\nv_and_b32 v4, 1, v3\nv_lshl_add_u32 v2, v4, 4, v2\nv_lshlrev_b32 v2, 5, v2\nv_lshrrev_b32 v4, 1, v3\nv_lshl_add_u32 v2, v4, 4, v2")
    a("s_lshl_b32 s6, s6, 16")
    a("v_add_u32 %s, s6, v2" % v(vpq))
    for p in range(4):
        a("s_add_u32 s4, %s, %d" % (s(S_SY + 1), p * 32 * KVP_ST))
        a("buffer_load_dwordx4 %s, %s, %s, s4 offen sc1" % (v(KV + 4 * p, 4), v(vkv), s(SRD_A, 4)))
    a("buffer_load_dwordx4 %s, %s, %s, %s offen sc1" % (v(Z, 4), v(vz), s(SRD_A, 4), s(S_SY + 1)))
    for pr in range(2):
        a("buffer_load_dwordx4 %s, %s, %s, 0 offen offset:%d sc1" % (v(PQ + 4 * pr, 4), v(vpq), s(SRD_B, 4), pr * 1024))
    P.add("oj", 7)
    tile_ids_big(a, "2x16", False)
    lw4, lwo, lwd, lws = a.new("pw4"), a.new("pwo"), a.new("pwd"), a.new("pws")
    a("s_cmp_eq_u32 %s, 15\ns_cbranch_scc1 %s" % (s(S_CT), lw4))
    a("s_lshl_b32 %s, %s, 7" % (s(s_row0), s(S_RT)))
    a("s_mov_b32 %s, 64\ns_mov_b32 %s, 32" % (s(s_A), s(s_B)))
    a("s_cmp_ge_u32 %s, 11\ns_cbranch_scc1 %s" % (s(S_CT), lwo))
    a("s_mov_b32 %s, %d\ns_mov_b32 %s, 32\ns_mov_b32 %s, %d\ns_lshl_b32 %s, %s, 8\ns_mov_b32 %s, 128" % (s(s_rs), LDA, s(s_ca), s(s_ldw), F * 2, s(s_colb), s(S_CT), s(s_xs)))
    srd(a, SRD_W, P_W3, 0, D * F * 2)
    srd(a, SRD_X, P_WS, WS_X1, SZ_PAD)
    a("s_branch %s" % lws)
    a.label(lwo)
    a("s_mov_b32 %s, 32\ns_mov_b32 %s, 65536\ns_mov_b32 %s, 1024\ns_sub_u32 %s, %s, 11\ns_lshl_b32 %s, %s, 8\ns_mov_b32 %s, 262144" % (s(s_rs), s(s_ca), s(s_ldw), s(s_colb), s(S_CT), s(s_colb), s(s_colb), s(s_xs)))
    srd(a, SRD_W, P_WO, 0, D * D * 2)
    srd(a, SRD_X, P_WS, WS_O, SZ_ACT)
    a.label(lws)
    big_addr_w(a, VW, 2, s_ldw, s_colb, s_A, s_B)
    lm = a.new("p3m")
    a("s_cmp_lg_u32 %s, 10\ns_cbranch_scc1 %s" % (s(S_CT), lm))
    a("v_lshrrev_b32 v2, 4, v0\nv_bfe_u32 v3, v0, 1, 3\nv_xor_b32 v2, v2, v3\nv_xor_b32 v3, 4, v2\nv_mov_b32 v4, 0x%x" % OOB)
    a("v_cmp_le_u32 vcc, 6, v2\ns_nop 1")
    a("v_cndmask_b32 %s, %s, v4, vcc\nv_cndmask_b32 %s, %s, v4, vcc" % (v(VW), v(VW), v(VW + 1), v(VW + 1)))
    a("v_cmp_le_u32 vcc, 6, v3\ns_nop 1")
    a("v_cndmask_b32 %s, %s, v4, vcc\nv_cndmask_b32 %s, %s, v4, vcc" % (v(VW + 2), v(VW + 2), v(VW + 3), v(VW + 3)))
    a.label(lm)
    a("s_lshl_b32 %s, %s, 6" % (s(s_ws), s(s_ldw)))
    ops0 = list(P.ops)
    for st in range(4):
        r, o = std_w(a, 8, False)(st)
        P.part(st, "w", r, o, SRD_W)
    big_addr_x(a, VX, 2, s_row0, s_rs, s_ca)
    a("s_branch %s" % lwd)
    a.label(lw4)
    ops1 = list(P.ops); P.ops = list(ops0)
    w4_setup(a)
    for st in range(4):
        r, o = w4_prep(a)(st)
        P.part(st, "w", r, o, SRD_W)
    assert P.ops == ops1
    a.label(lwd)
    P.wait(["oj"])
    for (x, y) in ((0, 2), (1, 3), (0, 1)):
        for i in range(2):
            a("v_pk_add_f32 %s, %s, %s" % (v(KV + 4 * x + 2 * i, 2), v(KV + 4 * x + 2 * i, 2), v(KV + 4 * y + 2 * i, 2)))
    for rot in (8, 4):
        for i in range(4):
            a("v_add_f32_dpp %s, %s, %s row_ror:%d row_mask:0xf bank_mask:0xf" % (v(Z + i), v(Z + i), v(Z + i), rot))
        a("s_nop 1")
    a("s_lshl_b32 s4, %s, 11\ns_add_u32 s4, s4, 0x%x" % (s(S_PW), SCR))
    a("v_lshl_add_u32 %s, v0, 4, s4" % v(vl))
    a("ds_write_b128 %s, %s" % (v(vl), v(KV, 4)))
    set_exec(a, 0xf)
    a("ds_write_b128 %s, %s offset:1024" % (v(vl), v(Z, 4)))
    full_exec(a)
    a("s_waitcnt lgkmcnt(0)")
    a("s_barrier")
    a("v_lshlrev_b32 %s, 4, v0\nv_add_u32 %s, 0x%x, %s" % (v(vl), v(vl), SCR, v(vl)))
    a("v_lshrrev_b32 v2, 4, v0\nv_lshlrev_b32 v2, 4, v2\nv_add_u32 v2, 0x%x, v2" % (SCR + 1024))
    for p in range(4):
        a("ds_read_b128 %s, %s offset:%d" % (v(KV + 4 * p, 4), v(vl), p * 2048))
        a("ds_read_b128 %s, v2 offset:%d" % (v(Z + 4 * p, 4), p * 2048))
    for pr in range(2): swap_pair(a, PQ + 4 * pr)
    a("s_waitcnt lgkmcnt(0)")
    for base in (KV, Z):
        for (x, y) in ((0, 2), (1, 3), (0, 1)):
            for i in range(2):
                a("v_pk_add_f32 %s, %s, %s" % (v(base + 4 * x + 2 * i, 2), v(base + 4 * x + 2 * i, 2), v(base + 4 * y + 2 * i, 2)))
    opk, opz = 64, 66
    a("v_cvt_pk_bf16_f32 %s, %s, %s" % (v(opk), v(KV), v(KV + 1)))
    a("v_cvt_pk_bf16_f32 %s, %s, %s" % (v(opk + 1), v(KV + 2), v(KV + 3)))
    a("v_cvt_pk_bf16_f32 %s, %s, %s" % (v(opz), v(Z), v(Z + 1)))
    a("v_cvt_pk_bf16_f32 %s, %s, %s" % (v(opz + 1), v(Z + 2), v(Z + 3)))
    a("s_nop 1")
    N, Dn = 68, 84
    for tb in range(4):
        a("v_mfma_f32_16x16x16_bf16 %s, %s, %s, 0" % (v(N + 4 * tb, 4), v(opk, 2), v(PQ + 2 * tb, 2)))
        a("v_mfma_f32_16x16x16_bf16 %s, %s, %s, 0" % (v(Dn + 4 * tb, 4), v(opz, 2), v(PQ + 2 * tb, 2)))
    mfma_drain(a)
    for tb in range(4):
        a("v_add_f32 %s, %s, %s" % (v(Dn + 4 * tb), fh(1e-6), v(Dn + 4 * tb)))
    for tb in range(4):
        a("v_rcp_f32 %s, %s" % (v(Dn + 4 * tb), v(Dn + 4 * tb)))
    a("s_nop 0")
    for tb in range(4):
        for i in range(2):
            a("v_pk_mul_f32 %s, %s, %s op_sel_hi:[1,0]" % (v(N + 4 * tb + 2 * i, 2), v(N + 4 * tb + 2 * i, 2), v(Dn + 4 * tb, 2)))
    for tb in range(4):
        a("v_cvt_pk_bf16_f32 %s, %s, %s" % (v(PQ + 2 * tb), v(N + 4 * tb), v(N + 4 * tb + 1)))
        a("v_cvt_pk_bf16_f32 %s, %s, %s" % (v(PQ + 2 * tb + 1), v(N + 4 * tb + 2), v(N + 4 * tb + 3)))
    a("s_nop 1")
    for pr in range(2):
        swap_pair(a, PQ + 4 * pr)
        a("buffer_store_dwordx4 %s, %s, %s, 0 offen offset:%d sc1" % (v(PQ + 4 * pr, 4), v(vpq), s(SRD_C, 4), pr * 1024))
    P.wait_all()
    lab = a.new("osig")
    a("s_mov_b64 exec, 1")
    a("v_mov_b32 v2, 0x%x\nv_mov_b32 v3, 1" % (LCNT + 4 * 3))
    a("ds_add_rtn_u32 v4, v2, v3")
    a("s_waitcnt lgkmcnt(0)")
    a("v_readfirstlane_b32 s4, v4")
    a("s_mov_b64 exec, -1")
    a("s_cmp_eq_u32 s4, 3\ns_cbranch_scc0 %s" % lab)
    signal(a, "s_lshr_b32 s4, s2, 5\ns_add_u32 s4, s4, %d" % CNT_O)
    a.label(lab)
    stamp(a, 12)
    a("s_cmp_eq_u32 %s, 15\ns_cbranch_scc1 p4_wait" % s(S_CT))
    def poll3():
        a("s_add_u32 s5, %s, %d\ns_lshl_b32 s5, s5, 8" % (s(S_RT), CNT_X1))
        a("s_lshr_b32 s6, %s, 1\ns_add_u32 s6, s6, %d\ns_lshl_b32 s6, s6, 8" % (s(S_RT), CNT_O))
        a("s_cmp_ge_u32 %s, 11\ns_cselect_b32 %s, s6, s5\ns_cselect_b32 %s, 32, 16" % (s(S_CT), s(S_SY + 2), s(S_SY + 3)))
        a("s_mov_b32 %s, s5" % s(S_SY + 1))
        poll(a, "v_mov_b32 v2, %s\nv_mov_b32 v4, %s\nv_mov_b32 v3, 16\nv_mov_b32 v5, %s\nv_cmp_eq_u32 vcc, 1, v0\ns_nop 1\nv_cndmask_b32 v2, v2, v4, vcc\nv_cndmask_b32 v3, v3, v5, vcc" % (s(S_SY + 1), s(S_SY + 2), s(S_SY + 3)))
    only_w0(a, poll3)
    a("s_barrier")
    stamp(a, 13)
    VRES, VRES1 = 24, 28
    def res_part(slot, srd_, half):
        ld = LDA if srd_ == SRD_B else 1024
        a("s_add_u32 %s, %s, %d" % (s(S_XO), s(S_T0 + 8), half * 64 * ld))
        P.part(slot, "x", [(VRES1 if srd_ == SRD_B else VRES) + j for j in range(4)], s(S_XO), srd_, SC1 if srd_ == SRD_B else "")
        P.ops[-4:] = ["res"] * 4
    def hook3(ev, st):
        if ev == "prewait" and st == 6:
            lab = a.new("nres")
            a("s_cmp_lt_u32 %s, 11\ns_cbranch_scc1 %s" % (s(S_CT), lab))
            ops = list(P.ops)
            srd(a, SRD_A, P_X, 0, SZ_ACT)
            srd(a, SRD_B, P_WS, WS_X1, SZ_PAD)
            small_addr_x(a, VRES, 2, s_row0, 1024)
            small_addr_x(a, VRES1, 2, s_row0, LDA)
            a("s_sub_u32 %s, %s, 11\ns_lshl_b32 %s, %s, 8" % (s(S_T0 + 8), s(S_CT), s(S_T0 + 8), s(S_T0 + 8)))
            res_part(0, SRD_A, 0)
            P.ops = ops
            a.label(lab)
        if ev == "prewait" and st == 7:
            lab, lab2 = a.new("nres"), a.new("nresd")
            a("s_cmp_lt_u32 %s, 11\ns_cbranch_scc1 %s" % (s(S_CT), lab))
            ops = list(P.ops)
            res_part(1, SRD_A, 1)
            P.ops = ops
            a("s_waitcnt vmcnt(8)")
            a("s_branch %s" % lab2)
            a.label(lab)
            a("s_waitcnt vmcnt(0)")
            a.label(lab2)
            P.ops = []
    producer_phase(P, 8, std_x(a, 8, False), std_w(a, 8, False), 4, 4, 14, xsc=SC1, hook=hook3)
    lab = a.new("nres2")
    a("s_cmp_lt_u32 %s, 11\ns_cbranch_scc1 %s" % (s(S_CT), lab))
    res_part(2, SRD_B, 0)
    a.label(lab)
    a("s_barrier")
    lab = a.new("nres3")
    a("s_cmp_lt_u32 %s, 11\ns_cbranch_scc1 %s" % (s(S_CT), lab))
    res_part(3, SRD_B, 1)
    a("s_waitcnt vmcnt(0)")
    a.label(lab)
    P.ops = []
    a("s_barrier")
    w4_setup(a)
    for st in range(4):
        r, o = w4_prep(a)(st)
        P.part(st, "w", r, o, SRD_W)
    a.label("p4_wait")
    tile_ids_small(a, 11)
    a("s_lshl_b32 %s, %s, 6" % (s(s_row0), s(S_RT)))
    small_addr_x(a, VX, 2, s_row0, LDG)
    srd(a, SRD_X, P_WS, WS_G, S * LDG)
    stamp(a, 18)
    def poll4():
        a("s_lshr_b32 s5, %s, 1\ns_add_u32 s5, s5, %d\ns_lshl_b32 %s, s5, 8" % (s(S_RT), CNT_G, s(S_SY + 1)))
        poll(a, "v_mov_b32 v2, %s\nv_mov_b32 v3, 15" % s(S_SY + 1))
    only_w0(a, poll4)
    a("s_barrier")
    stamp(a, 19)
    def x4(st):
        a("s_mov_b32 %s, %d" % (s(S_XO), st * 256))
        return [VX + j for j in range(4)], s(S_XO)
    P.ops = []
    producer_phase(P, 11, x4, w4_prep(a), 4, 4, 20, xsc=SC1)
    endk(a)

def generate():
    a = Asm()
    head = ["; x + linear-attention block + mixer/shift MLP for gfx950: one persistent launch, four GEMM phases.",
            "; Generated by my own generator script.",
            "; @launch grid=(256,1,1) block=(512,1,1) lds=%d" % LDS_ALL,
            '.amdgcn_target "amdgcn-amd-amdhsa--gfx950"\n.text']
    kernel_head(a, KNAME, 256)
    a("s_load_dwordx16 s[36:51], s[0:1], 0")
    a("s_load_dwordx4 s[52:55], s[0:1], 64")
    a("s_load_dwordx2 s[56:57], s[0:1], 80")
    wave_id(a)
    if OPT.prof: a("v_mov_b32 %s, 0" % v(V_ST))
    stamp(a, 0, True); stamp(a, 1)
    tile_ids_big(a, "4x8", OPT.rot1)
    a("s_cmp_ge_u32 s3, 4\ns_cbranch_scc1 prod")
    wave_mn(a)
    hi = [c_p1(a), c_p2(a), c_p3(a), c_p4(a)]
    a.label("prod")
    p_all(a)
    kernel_tail(a, KNAME)
    nv = 256 if OPT.prof else (max(hi + [120]) + 7) // 8 * 8
    return "\n".join(head) + "\n" + a.text() + '.section .rodata,"a"\n' + descriptor(KNAME, nv)

if __name__ == "__main__":
    import argparse
    ap = argparse.ArgumentParser()
    ap.add_argument("out"); ap.add_argument("--prof", action="store_true")
    ap.add_argument("--nopf", action="store_true"); ap.add_argument("--norot1", action="store_true")
    ap.add_argument("--depth", type=int, default=2)
    x = ap.parse_args()
    OPT.prof = x.prof; OPT.rot = False; OPT.rot1 = not x.norot1; OPT.prefetch = not x.nopf; OPT.depth = x.depth
    open(x.out, "w").write(generate())
    print("wrote", x.out)
```

```python
import sys
sys.path.insert(0, "gen")
from g3_common import *
from g3_epi import *

KNAME = "parallel_sum__linear_attn_block__mixer_s_mlp__prompt_kernel"
s_row0, s_rs, s_ca, s_ldw, s_colb, s_A, s_B, s_xs, s_ws = [S_PP + i for i in range(9)]
VX, VW, VT = 8, 12, 16
sP, sB, sL = S_EP, S_EP + 2, S_EP + 3

def consumer_done(a, word, idx_code):
    lab = a.new("cd")
    a("s_waitcnt vmcnt(0)")
    a("s_mov_b64 exec, 1")
    a("v_mov_b32 v2, 0x%x\nv_mov_b32 v3, 1" % (LCNT + 4 * word))
    a("ds_add_rtn_u32 v4, v2, v3")
    a("s_waitcnt lgkmcnt(0)")
    a("v_readfirstlane_b32 s4, v4")
    a("s_mov_b64 exec, -1")
    a("s_cmp_eq_u32 s4, 3\ns_cbranch_scc0 %s" % lab)
    signal(a, idx_code)
    a.label(lab)

def only_w0(a, body):
    lab = a.new("w0")
    a("s_cmp_lg_u32 %s, 0\ns_cbranch_scc1 %s" % (s(S_PW), lab))
    body()
    a.label(lab)

def lanes_all(off_code, target):
    return off_code + "\nv_mov_b32 v3, %d" % target

def small_token_offsets(a, dst, rs_shift, lanefn):
    a("s_lshl_b32 s4, %s, 6\ns_lshl_b32 s5, %s, 5\ns_add_u32 s4, s4, s5" % (s(S_RT), s(S_WM)))
    a("v_and_b32 %s, 15, v0" % v(dst))
    a("v_add_u32 %s, s4, %s" % (v(dst), v(dst)))
    lanefn(dst + 1)
    a("v_lshl_add_u32 %s, %s, %d, %s" % (v(dst), v(dst), rs_shift, v(dst + 1)))
    a("v_add_u32 %s, %d, %s" % (v(dst + 1), 16 << rs_shift, v(dst)))

def small_mfmas(B):
    def f(set_, first):
        out = []
        for k2 in range(2):
            for tb in range(2):
                for ff in range(2):
                    out.append(mm(B.A(tb, ff), B.wf[set_] + k2 * 8 + ff * 4, B.xf[set_] + k2 * 8 + tb * 4, first and k2 == 0))
        return out
    return f

def c_p1(a):
    R = Regs(8)
    B = Big(R, True, True)
    vtok = R.alloc(4)
    X = R.alloc(24, 4)
    SW = R.alloc(4); SR = R.alloc(1); RD = R.alloc(16, 4)
    T = B.xf[0]
    B.setup(a, 2)
    lab = a.new("lz")
    a("s_cmp_lg_u32 s3, 0\ns_cbranch_scc1 %s" % lab)
    a("v_lshlrev_b32 v2, 2, v0\nv_add_u32 v2, 0x%x, v2\nv_mov_b32 v3, 0" % LCNT)
    set_exec(a, 0xffff)
    a("ds_write_b32 v2, v3")
    full_exec(a)
    a.label(lab)
    a("s_waitcnt lgkmcnt(0)")
    lab = a.new("gz")
    a("s_or_b32 s4, s2, s3\ns_cmp_lg_u32 s4, 0\ns_cbranch_scc1 %s" % lab)
    cnt_srd(a)
    a("v_lshlrev_b32 v2, 8, v0\nv_mov_b32 v3, 0")
    a("buffer_store_dword v3, v2, %s, 0 offen sc1" % s(SRD_D, 4))
    srd(a, SRD_C, P_DBG, 0, 256)
    a("s_waitcnt vmcnt(0)")
    a("v_mov_b32 v2, 0\nv_mov_b32 v3, 1")
    a("s_mov_b64 exec, 1")
    a("buffer_store_dword v3, v2, %s, 0 offen sc1" % s(SRD_C, 4))
    a("s_mov_b64 exec, -1")
    a.label(lab)
    srd(a, SRD_A, P_WS, WS_PQ, SZ_ACT)
    srd(a, SRD_B, P_WS, WS_KVP, 16 * 32 * KVP_ST)
    srd(a, SRD_C, P_WS, WS_XST, S * 8)
    srd(a, SRD_D, P_WS, WS_H, SZ_PAD)
    a("s_cmp_ge_u32 %s, 4\ns_cbranch_scc0 c1_sw" % s(S_CT))
    a("s_cmp_ge_u32 %s, 12\ns_cbranch_scc1 c1_sw" % s(S_CT))
    mainloop(a, 8, B.reads, lambda st, first: B.mfmas(st, first, False), 2)
    mfma_drain(a)
    stats_from_gram(a, B, T, False)
    colsum_to_table(a, B, T + 12)
    a("s_waitcnt lgkmcnt(0)\ns_barrier")
    kv_epilogue(a, B, T, X)
    a("s_branch c1_done")
    a.label("c1_sw")
    mainloop(a, 8, B.reads, lambda st, first: B.mfmas(st, first, True), 2)
    mfma_drain(a)
    stats_from_gram(a, B, T, True)
    colsum_to_table(a, B, T + 12)
    a("s_cmp_ge_u32 %s, 12\ns_cbranch_scc1 c1_h" % s(S_CT))
    big_token_offsets(a, vtok, rs_shift=5, lanefn=lane_pair(65536)(a))
    a("s_lshl_b32 s4, %s, 3\ns_lshl_b32 s5, %s, 2\ns_add_u32 s4, s4, s5\ns_lshl_b32 %s, s4, 16" % (s(S_CT), s(S_WN), s(sB)))
    pair_soffsets(a, sP, sB, 16)
    a("s_waitcnt lgkmcnt(0)\ns_barrier")
    q_epilogue(a, B, T, SRD_A, vtok, sP)
    a("s_branch c1_done")
    a.label("c1_h")
    a("s_mov_b32 %s, %d" % (s(sL), LDA))
    Stager.setup(a, SW, SR, vtok, rs_sgpr=sL)
    a("s_sub_u32 s4, %s, 12\ns_lshl_b32 s4, s4, 8\ns_lshl_b32 s5, %s, 7\ns_add_u32 %s, s4, s5\ns_add_u32 %s, %s, %d" % (s(S_CT), s(S_WN), s(sP), s(sP + 1), s(sP), 8 * LDA))
    a("s_waitcnt lgkmcnt(0)\ns_barrier")
    gelu_epilogue(a, B, T, True, Stager(a, SW, SR, vtok, SRD_D, sP, sP + 1, RD))
    a.label("c1_done")
    stamp(a, 5)
    consumer_done(a, 0, "s_add_u32 s4, %s, %d" % (s(S_RT), CNT_H))
    stamp(a, 6)
    return R.hi

def c_p2(a):
    tile_ids_small(a, 4)
    R = Regs(8)
    B = Small(R)
    vtok = R.alloc(2); vtk8 = R.alloc(2)
    XR = R.alloc(4, 4)
    L = R.alloc(12, 4)
    small_token_offsets(a, vtok, 10, lane_pair(32)(a))
    sF = S_EP
    a("s_lshl_b32 s4, %s, 7\ns_lshl_b32 s5, %s, 6\ns_add_u32 %s, s4, s5" % (s(S_CT), s(S_WN), s(sF)))
    a("s_lshl_b32 s4, %s, 6\ns_lshl_b32 s5, %s, 5\ns_add_u32 s4, s4, s5" % (s(S_RT), s(S_WM)))
    a("v_and_b32 %s, 15, v0" % v(vtk8))
    a("v_add_u32 %s, s4, %s" % (v(vtk8), v(vtk8)))
    a("v_lshlrev_b32 %s, 3, %s" % (v(vtk8), v(vtk8)))
    srd(a, SRD_A, P_X, 0, SZ_ACT)
    srd(a, SRD_B, P_WS, WS_XST, S * 8)
    for tb in range(2):
        a("buffer_load_dwordx4 %s, %s, %s, %s offen" % (v(L + 4 * tb, 4), v(vtok + tb), s(SRD_A, 4), s(sF)))
    B.setup(a, 2)
    srd(a, SRD_C, P_WS, WS_X1, SZ_PAD)
    a("s_barrier")
    stamp(a, 7)
    for tb in range(2):
        a("buffer_load_dwordx2 %s, %s, %s, 0 offen offset:%d sc1" % (v(L + 8 + 2 * tb, 2), v(vtk8), s(SRD_B, 4), tb * 128))
    mainloop(a, 4, B.reads, small_mfmas(B), 8)
    srd(a, SRD_D, P_WS, WS_X1ST, 32 * 8 * 512)
    a("s_waitcnt vmcnt(0)")
    for tb in range(2): swap_pair(a, L + 4 * tb)
    mfma_drain(a)
    T = B.xf[0]
    for tb in range(2):
        pm = L + 8 + 2 * tb
        a("v_mul_f32 %s, %s, %s" % (v(pm), v(pm), v(pm + 1)))
        a("v_sub_f32 %s, 0, %s" % (v(pm), v(pm)))
        for f in range(2):
            A = B.A(tb, f); src = L + 4 * tb + 2 * f
            unpack_bf16(a, XR, XR + 1, src); unpack_bf16(a, XR + 2, XR + 3, src + 1)
            for i in range(2):
                a("v_pk_fma_f32 %s, %s, %s, %s op_sel:[0,1,0] op_sel_hi:[1,1,0]" % (v(XR + 2 * i, 2), v(XR + 2 * i, 2), v(pm, 2), v(pm, 2)))
            for i in range(2):
                a("v_pk_add_f32 %s, %s, %s" % (v(A + 2 * i, 2), v(A + 2 * i, 2), v(XR + 2 * i, 2)))
    vw, vs = T + 20, T + 21
    a("s_lshl_b32 s5, %s, 2" % s(S_WN))
    a("v_lshrrev_b32 %s, 5, v0\nv_add_u32 %s, s5, %s" % (v(vw), v(vw), v(vw)))
    a("v_and_b32 %s, 7, v0\nv_xor_b32 %s, %s, %s\nv_lshlrev_b32 %s, 4, %s" % (v(vs), v(vw), v(vw), v(vs), v(vw), v(vw)))
    a("v_and_b32 %s, 15, v0\nv_lshl_add_u32 %s, %s, 7, %s" % (v(vs), v(vw), v(vs), v(vw)))
    a("v_bfe_u32 %s, v0, 4, 1\nv_lshl_add_u32 %s, %s, 3, %s" % (v(vs), v(vw), v(vs), v(vw)))
    a("s_lshl_b32 s4, %s, 12\ns_add_u32 s4, s4, 0x%x" % (s(S_WM), STG))
    a("v_add_u32 %s, s4, %s" % (v(vw), v(vw)))
    a("v_xor_b32 %s, 32, %s" % (v(vw + 2), v(vw)))
    for tb in range(2):
        o = T + 4 * tb
        for f in range(2):
            A = B.A(tb, f)
            a("v_cvt_pk_bf16_f32 %s, %s, %s" % (v(o + 2 * f), v(A), v(A + 1)))
            a("v_cvt_pk_bf16_f32 %s, %s, %s" % (v(o + 2 * f + 1), v(A + 2), v(A + 3)))
            a("ds_write_b64 %s, %s offset:%d" % (v(vw + 2 * f), v(o + 2 * f, 2), tb * 2048))
    for tb in range(2):
        st = T + 8 + 2 * tb
        p, q_ = T + 12, T + 14
        A0, A1 = B.A(tb, 0), B.A(tb, 1)
        a("v_pk_add_f32 %s, %s, %s" % (v(p, 2), v(A0, 2), v(A0 + 2, 2)))
        a("v_pk_mul_f32 %s, %s, %s" % (v(q_, 2), v(A0, 2), v(A0, 2)))
        a("v_pk_add_f32 %s, %s, %s" % (v(p, 2), v(p, 2), v(A1, 2)))
        a("v_pk_fma_f32 %s, %s, %s, %s" % (v(q_, 2), v(A0 + 2, 2), v(A0 + 2, 2), v(q_, 2)))
        a("v_pk_add_f32 %s, %s, %s" % (v(p, 2), v(p, 2), v(A1 + 2, 2)))
        a("v_pk_fma_f32 %s, %s, %s, %s" % (v(q_, 2), v(A1, 2), v(A1, 2), v(q_, 2)))
        a("v_pk_fma_f32 %s, %s, %s, %s" % (v(q_, 2), v(A1 + 2, 2), v(A1 + 2, 2), v(q_, 2)))
        a("v_add_f32 %s, %s, %s" % (v(st), v(p), v(p + 1)))
        a("v_add_f32 %s, %s, %s" % (v(st + 1), v(q_), v(q_ + 1)))
        xlane_sum_q(a, st, T + 16); xlane_sum_q(a, st + 1, T + 17)
    a("s_lshl_b32 s4, %s, 9\ns_lshl_b32 s5, %s, 3\ns_add_u32 s4, s4, s5\ns_add_u32 s4, s4, 0x%x" % (s(S_WM), s(S_WN), STG + 8192))
    a("v_and_b32 %s, 15, v0\nv_lshl_add_u32 %s, %s, 4, s4" % (v(vs), v(vs), v(vs)))
    set_exec(a, 0xffff)
    for tb in range(2):
        a("ds_write_b64 %s, %s offset:%d" % (v(vs), v(T + 8 + 2 * tb, 2), tb * 256))
    full_exec(a)
    a("v_lshrrev_b32 %s, 3, v0\nv_and_b32 %s, 7, v0\nv_xor_b32 %s, %s, %s\nv_lshlrev_b32 %s, 4, %s" % (v(T), v(T + 1), v(T + 2), v(T), v(T + 1), v(T + 2), v(T + 2)))
    a("v_lshl_add_u32 %s, %s, 7, %s" % (v(T + 2), v(T), v(T + 2)))
    a("s_lshl_b32 s4, s3, 11\ns_add_u32 s4, s4, 0x%x" % STG)
    a("v_add_u32 %s, s4, %s" % (v(T + 2), v(T + 2)))
    a("s_lshl_b32 s4, %s, 6\ns_lshl_b32 s5, s3, 4\ns_add_u32 s4, s4, s5" % s(S_RT))
    a("s_mov_b32 s5, %d" % LDA)
    a("v_add_u32 %s, s4, %s\nv_mul_u32_u24 %s, s5, %s\nv_lshl_add_u32 %s, %s, 4, %s" % (v(T), v(T), v(T), v(T), v(T), v(T + 1), v(T)))
    a("s_lshl_b32 %s, %s, 7\ns_add_u32 %s, %s, %d" % (s(sF), s(S_CT), s(sF + 1), s(sF), 8 * LDA))
    a("v_lshlrev_b32 %s, 4, v0\nv_add_u32 %s, 0x%x, %s" % (v(T + 3), v(T + 3), STG + 8192, v(T + 3)))
    a("s_waitcnt lgkmcnt(0)")
    a("s_barrier")
    for i in range(2):
        a("ds_read_b128 %s, %s offset:%d" % (v(T + 4 + 4 * i, 4), v(T + 2), i * 1024))
    a("ds_read_b128 %s, %s" % (v(T + 12, 4), v(T + 3)))
    a("s_lshl_b32 s4, %s, 3\ns_add_u32 s4, s4, %s\ns_lshl_b32 s4, s4, 9" % (s(S_RT), s(S_CT)))
    a("v_lshlrev_b32 %s, 3, v0" % v(T + 3))
    a("s_waitcnt lgkmcnt(0)")
    for i in range(2):
        a("buffer_store_dwordx4 %s, %s, %s, %s offen sc1" % (v(T + 4 + 4 * i, 4), v(T), s(SRD_C, 4), s(sF + i)))
    lab = a.new("nst")
    a("s_cmp_lg_u32 s3, 0\ns_cbranch_scc1 %s" % lab)
    a("v_pk_add_f32 %s, %s, %s" % (v(T + 12, 2), v(T + 12, 2), v(T + 14, 2)))
    a("buffer_store_dwordx2 %s, %s, %s, s4 offen sc1" % (v(T + 12, 2), v(T + 3), s(SRD_D, 4)))
    a.label(lab)
    stamp(a, 11)
    consumer_done(a, 1, "s_lshr_b32 s4, %s, 1\ns_add_u32 s4, s4, %d" % (s(S_RT), CNT_X1))
    stamp(a, 12)
    a("s_barrier")
    return R.hi

def c_p3(a):
    tile_ids_big(a, "2x16", False)
    a("s_cmp_eq_u32 %s, 15\ns_cbranch_scc1 c4_start" % s(S_CT))
    R = Regs(8)
    B = Big(R, False, True)
    vtok = R.alloc(4)
    X = R.alloc(64, 4)
    VR = R.alloc(8)
    SW = R.alloc(4); SR = R.alloc(1)
    RD = X + 16
    T = B.xf[0]
    B.setup(a, 2)
    a("s_cmp_ge_u32 %s, 11\ns_cbranch_scc1 c3_wo" % s(S_CT))
    a("s_lshl_b32 s4, %s, 1\ns_add_u32 s4, s4, %s\ns_lshl_b32 s4, s4, 12\ns_lshl_b32 s5, %s, 8\ns_add_u32 s4, s4, s5" % (s(S_RT), s(S_WM), s(S_WN)))
    a("v_and_b32 %s, 31, v0\nv_lshlrev_b32 %s, 3, %s\nv_lshrrev_b32 v3, 5, v0\nv_lshl_add_u32 %s, v3, 11, %s\nv_add_u32 %s, s4, %s" % ((v(VR),) * 7))
    srd(a, SRD_A, P_WS, WS_X1ST, 32 * 8 * 512)
    srd(a, SRD_D, P_WS, WS_G, S * LDG)
    a("s_mov_b32 %s, %d" % (s(sL), LDG))
    Stager.setup(a, SW, SR, vtok, rs_sgpr=sL)
    a("s_lshl_b32 s4, %s, 8\ns_lshl_b32 s5, %s, 7\ns_add_u32 %s, s4, s5\ns_add_u32 %s, %s, %d" % (s(S_CT), s(S_WN), s(sP), s(sP + 1), s(sP), 8 * LDG))
    a("s_barrier")
    stamp(a, 13)
    for p in range(4):
        a("buffer_load_dwordx2 %s, %s, %s, 0 offen offset:%d sc1" % (v(X + 2 * p, 2), v(VR), s(SRD_A, 4), p * 512))
    mainloop(a, 8, B.reads, lambda st, first: B.mfmas(st, first, True), 14)
    a("s_waitcnt vmcnt(0)")
    for (x, y) in ((0, 2), (1, 3), (0, 1)):
        a("v_pk_add_f32 %s, %s, %s" % (v(X + 2 * x, 2), v(X + 2 * x, 2), v(X + 2 * y, 2)))
    for i in range(2): a("v_mov_b32 %s, %s" % (v(X + 4 + i), v(X + i)))
    a("s_nop 1")
    for i in range(2): a("v_permlane32_swap_b32 %s, %s" % (v(X + 4 + i), v(X + i)))
    a("s_nop 1")
    a("v_pk_add_f32 %s, %s, %s" % (v(X, 2), v(X, 2), v(X + 4, 2)))
    a("v_mul_f32 %s, %s, %s" % (v(X), fh(1.0 / D), v(X)))
    a("v_mul_f32 %s, %s, %s" % (v(X + 1), fh(1.0 / D), v(X + 1)))
    a("v_fma_f32 %s, -%s, %s, %s" % (v(X + 1), v(X), v(X), v(X + 1)))
    a("v_add_f32 %s, %s, %s" % (v(X + 1), fh(EPS), v(X + 1)))
    a("v_rsq_f32 %s, %s" % (v(X + 1), v(X + 1)))
    a("s_lshl_b32 s4, %s, 8\ns_lshl_b32 s5, %s, 7\ns_add_u32 s4, s4, s5\ns_add_u32 s4, s4, 0x%x" % (s(S_WM), s(S_WN), TAB_M))
    a("v_and_b32 v2, 31, v0\nv_lshl_add_u32 v2, v2, 2, s4")
    a("ds_write_b32 v2, %s" % v(X))
    a("ds_write_b32 v2, %s offset:512" % v(X + 1))
    colsum_to_table(a, B, T + 12)
    a("s_waitcnt lgkmcnt(0)\ns_barrier")
    gelu_epilogue(a, B, T, False, Stager(a, SW, SR, vtok, SRD_D, sP, sP + 1, RD))
    a("s_branch c3_done")
    a.label("c3_wo")
    a("s_mov_b32 %s, %d" % (s(sL), LDA))
    Stager.setup(a, SW, SR, vtok, rs_sgpr=sL)
    a("s_sub_u32 s4, %s, 11\ns_lshl_b32 s4, s4, 8\ns_lshl_b32 s5, %s, 7\ns_add_u32 %s, s4, s5\ns_add_u32 %s, %s, %d" % (s(S_CT), s(S_WN), s(sP), s(sP + 1), s(sP), 8 * LDA))
    srd(a, SRD_C, P_WS, WS_BASE, SZ_PAD)
    a("s_lshl_b32 s4, %s, 3\ns_lshl_b32 s5, %s, 2\ns_add_u32 s4, s4, s5" % (s(S_WN), s(S_WM)))
    a("v_lshrrev_b32 v2, 5, v0\nv_add_u32 v2, s4, v2\nv_and_b32 v3, 15, v0\nv_xor_b32 v2, v2, v3\nv_lshlrev_b32 v2, 4, v2\nv_lshl_add_u32 v2, v3, 8, v2")
    a("v_bfe_u32 v3, v0, 4, 1\nv_lshl_add_u32 v2, v3, 3, v2")
    a("s_lshl_b32 s4, %s, 15\ns_lshl_b32 s5, %s, 13\ns_xor_b32 s6, s5, 0x2000\ns_add_u32 s5, s5, s4\ns_add_u32 s6, s6, s4" % (s(S_WM), s(S_WN)))
    for lf in range(4):
        if lf: a("v_xor_b32 v3, %d, v2" % (lf * 32))
        a("v_add_u32 %s, s5, %s" % (v(VR + lf), "v3" if lf else "v2"))
        a("v_add_u32 %s, s6, %s" % (v(VR + 4 + lf), "v3" if lf else "v2"))
    a("s_barrier")
    stamp(a, 13)
    B.use_cs = False
    mainloop(a, 8, B.reads, lambda st, first: B.mfmas(st, first, True), 14)
    B.use_cs = True
    a("s_barrier")
    for src in range(2):
        for ltb in range(4):
            for lf in range(4):
                a("ds_read_b64 %s, %s offset:%d" % (v(X + 32 * src + (ltb * 4 + lf) * 2, 2), v(VR + 4 * (ltb >> 1) + lf), (ltb & 1) * 4096))
            if ltb & 1: a("s_waitcnt lgkmcnt(0)")
        if src == 0:
            for i in range(8): a("v_add_u32 %s, 0x10000, %s" % (v(VR + i), v(VR + i)))
    tmp = T
    stg = Stager(a, SW, SR, vtok, SRD_C, sP, sP + 1, T + 32)
    gi = 0
    for ltb in range(4):
        for h in range(2):
            for f in range(2):
                i = (ltb * 4 + 2 * h + f) * 2; t = tmp + 8 * f
                unpack_bf16(a, t, t + 1, X + i); unpack_bf16(a, t + 2, t + 3, X + i + 1)
                unpack_bf16(a, t + 4, t + 5, X + 32 + i); unpack_bf16(a, t + 6, t + 7, X + 32 + i + 1)
            stg.flush()
            for f in range(2):
                t = tmp + 8 * f
                for k in range(2):
                    a("v_pk_add_f32 %s, %s, %s" % (v(t + 2 * k, 2), v(t + 2 * k, 2), v(t + 4 + 2 * k, 2)))
            for f in range(2):
                A = B.A(ltb, 2 * h + f); t = tmp + 8 * f
                for k in range(2):
                    a("v_pk_add_f32 %s, %s, %s" % (v(A + 2 * k, 2), v(A + 2 * k, 2), v(t + 2 * k, 2)))
            o = tmp + 16 + 4 * (gi & 1); gi += 1
            for f in range(2):
                A = B.A(ltb, 2 * h + f)
                a("v_cvt_pk_bf16_f32 %s, %s, %s" % (v(o + 2 * f), v(A), v(A + 1)))
                a("v_cvt_pk_bf16_f32 %s, %s, %s" % (v(o + 2 * f + 1), v(A + 2), v(A + 3)))
            stg.put(ltb, h, o)
    stg.flush()
    a.label("c3_done")
    stamp(a, 17)
    consumer_done(a, 2, "s_add_u32 s4, %s, %d" % (s(S_RT), CNT_G))
    stamp(a, 18)
    return R.hi

def c_p4(a):
    a.label("c4_start")
    tile_ids_small(a, 11)
    R = Regs(8)
    B = Small(R)
    vtok = R.alloc(2); vtb = R.alloc(2); L = R.alloc(8, 4); Xr = R.alloc(4, 4)
    small_token_offsets(a, vtok, 10, lane_pair(32)(a))
    a("s_lshl_b32 s4, %s, 6\ns_lshl_b32 s5, %s, 5\ns_add_u32 s4, s4, s5" % (s(S_RT), s(S_WM)))
    a("v_and_b32 v2, 15, v0\nv_add_u32 v2, s4, v2\ns_mov_b32 s5, %d\nv_mad_u32_u24 %s, v2, s5, %s" % (LDA - 1024, v(vtb), v(vtok)))
    a("v_add_u32 %s, %d, %s" % (v(vtb + 1), 16 * LDA, v(vtb)))
    sF = S_EP
    a("s_lshl_b32 s4, %s, 7\ns_lshl_b32 s5, %s, 6\ns_add_u32 %s, s4, s5" % (s(S_CT), s(S_WN), s(sF)))
    srd(a, SRD_A, P_WS, WS_BASE, SZ_PAD)
    srd(a, SRD_C, P_OUT, 0, SZ_ACT)
    B.setup(a, 2)
    a("s_barrier")
    stamp(a, 19)
    for tb in range(2):
        a("buffer_load_dwordx4 %s, %s, %s, %s offen sc1" % (v(L + 4 * tb, 4), v(vtb + tb), s(SRD_A, 4), s(sF)))
    mainloop(a, 11, B.reads, small_mfmas(B), 20, last_barrier=False)
    a("s_waitcnt vmcnt(0)")
    for tb in range(2): swap_pair(a, L + 4 * tb)
    mfma_drain(a)
    T = B.xf[0]
    for tb in range(2):
        for f in range(2):
            A = B.A(tb, f); src = L + 4 * tb + 2 * f
            unpack_bf16(a, Xr, Xr + 1, src); unpack_bf16(a, Xr + 2, Xr + 3, src + 1)
            for i in range(2):
                a("v_pk_add_f32 %s, %s, %s" % (v(A + 2 * i, 2), v(A + 2 * i, 2), v(Xr + 2 * i, 2)))
    for tb in range(2):
        o = T + 4 * tb
        for f in range(2):
            A = B.A(tb, f)
            a("v_cvt_pk_bf16_f32 %s, %s, %s" % (v(o + 2 * f), v(A), v(A + 1)))
            a("v_cvt_pk_bf16_f32 %s, %s, %s" % (v(o + 2 * f + 1), v(A + 2), v(A + 3)))
    a("s_nop 1")
    for tb in range(2):
        swap_pair(a, T + 4 * tb)
        a("buffer_store_dwordx4 %s, %s, %s, %s offen" % (v(T + 4 * tb, 4), v(vtok + tb), s(SRD_C, 4), s(sF)))
    stamp(a, 23)
    if getattr(OPT, "dbgtime", False):
        lab = a.new("dbgt")
        a("s_cmp_lg_u32 s3, 0\ns_cbranch_scc1 %s" % lab)
        a("s_waitcnt vmcnt(0)\ns_memrealtime s[4:5]\ns_memtime s[6:7]\ns_waitcnt lgkmcnt(0)")
        a("s_sub_u32 s4, s4, s94\ns_sub_u32 s6, s6, s96")
        srd(a, SRD_A, P_DBG, 0, 256)
        a("s_and_b32 s5, s2, 3\ns_lshl_b32 s5, s5, 3\ns_add_u32 s5, s5, 16")
        a("v_mov_b32 v2, s5\nv_mov_b32 v4, s4\nv_mov_b32 v5, s6\ns_mov_b64 exec, 1")
        a("buffer_store_dwordx2 v[4:5], v2, %s, 0 offen" % s(SRD_A, 4))
        a.label(lab)
    if OPT.prof: a("s_waitcnt vmcnt(0)")
    endk(a)
    return R.hi

def std_x(a, nst, rot):
    def f(st):
        if rot:
            stage_index(a, st, nst)
            a("s_mul_i32 %s, %s, %s" % (s(S_XO), s(S_G), s(s_xs)))
        else:
            a("s_mul_i32 %s, %s, %d" % (s(S_XO), s(s_xs), st))
        return [VX + j for j in range(4)], s(S_XO)
    return f
def std_w(a, nst, rot):
    def f(st):
        if rot: a("s_mul_i32 %s, %s, %s" % (s(S_WO), s(S_G), s(s_ws)))
        else:   a("s_mul_i32 %s, %s, %d" % (s(S_WO), s(s_ws), st))
        return [VW + j for j in range(4)], s(S_WO)
    return f

def w4_setup(a):
    a("s_lshr_b32 s4, s2, 3\ns_lshr_b32 s4, s4, 2\ns_lshl_b32 %s, s4, 7" % s(s_colb))
    small_addr_w(a, VW, 2, 1024, s_colb)
    srd(a, SRD_W, P_W4, 0, F * D * 2)
def w4_prep(a):
    def f(st):
        for j in range(4): a("v_add_u32 %s, 0x%x, %s" % (v(VT + j), st * 131072, v(VW + j)))
        return [VT + j for j in range(4)], "0"
    return f

def p_all(a):
    P = Prod(a)
    a("s_sub_u32 %s, s3, 4" % s(S_PW))
    a("s_lshl_b32 %s, %s, 12" % (s(S_M0B), s(S_PW)))
    a("s_lshl_b32 %s, %s, 7" % (s(s_row0), s(S_RT)))
    a("s_mov_b32 %s, 1024\ns_mov_b32 %s, 32\ns_mov_b32 %s, 128" % (s(s_rs), s(s_ca), s(s_xs)))
    a("s_mov_b32 %s, 3072\ns_mov_b32 %s, 64\ns_mov_b32 %s, 32\ns_lshl_b32 %s, %s, 8" % (s(s_ldw), s(s_A), s(s_B), s(s_colb), s(S_CT)))
    l1, l2, l3 = a.new("p1k"), a.new("p1g"), a.new("p1h")
    a("s_cmp_lt_u32 %s, 4\ns_cbranch_scc1 %s" % (s(S_CT), l2))
    a("s_cmp_lt_u32 %s, 12\ns_cbranch_scc1 %s" % (s(S_CT), l1))
    a("s_mov_b32 %s, 1024\ns_sub_u32 %s, %s, 12\ns_lshl_b32 %s, %s, 8" % (s(s_ldw), s(s_colb), s(S_CT), s(s_colb), s(s_colb)))
    a("s_branch %s" % l2)
    a.label(l1)
    a("s_mov_b32 %s, 32\ns_mov_b32 %s, 1024\ns_sub_u32 %s, %s, 4\ns_lshl_b32 %s, %s, 7\ns_add_u32 %s, %s, 1024" % (s(s_A), s(s_B), s(s_colb), s(S_CT), s(s_colb), s(s_colb), s(s_colb), s(s_colb)))
    a.label(l2)
    big_addr_x(a, VX, 2, s_row0, s_rs, s_ca)
    big_addr_w(a, VW, 2, s_ldw, s_colb, s_A, s_B)
    a("s_lshl_b32 %s, %s, 6" % (s(s_ws), s(s_ldw)))
    a("s_waitcnt lgkmcnt(0)")
    srd(a, SRD_X, P_X, 0, SZ_ACT)
    srd(a, SRD_W, P_WQKV, 0, D * 3 * D * 2)
    a("s_cmp_lt_u32 %s, 12\ns_cbranch_scc1 %s" % (s(S_CT), l3))
    srd(a, SRD_W, P_W1, 0, D * D * 2)
    a.label(l3)
    stamp(a, 2)
    VFLAG = 44
    def hook1(ev, st):
        if ev == "issued" and st == 7:
            if OPT.prefetch:
                srd(a, SRD_A, P_W2, 0, D * D * 2)
                srd(a, SRD_B, P_WO, 0, D * D * 2)
                srd(a, SRD_C, P_W3, 0, D * F * 2)
                srd(a, SRD_D, P_W4, 0, F * D * 2)
                a("s_lshl_b32 s4, s2, 2\ns_add_u32 s4, s4, %s\ns_lshl_b32 s4, s4, 10" % s(S_PW))
                a("v_lshl_add_u32 v16, v0, 4, s4")
                a("v_add_u32 v17, 0x%x, v16" % (1024 * 1024))
                a("v_add_u32 v18, 0x%x, v16" % ((-512 * 1024) & 0xffffffff))
                for (d, adr, r) in ((20, 16, SRD_A), (24, 18, SRD_B), (28, 16, SRD_C), (32, 17, SRD_C), (36, 16, SRD_D), (40, 17, SRD_D)):
                    a("buffer_load_dwordx4 %s, %s, %s, 0 offen" % (v(d, 4), v(adr), s(r, 4)))
                P.add("pf", 6)
            srd(a, SRD_A, P_DBG, 0, 256)
            a("v_mov_b32 v2, 0")
            a("buffer_load_dword %s, v2, %s, 0 offen sc1" % (v(VFLAG), s(SRD_A, 4)))
            P.add("flag", 1)
    producer_phase(P, 8, std_x(a, 8, OPT.rot1), std_w(a, 8, OPT.rot1), 0, OPT.depth, 3, hook=hook1)
    a("s_barrier")
    P.wait(["flag"])
    lab = a.new("ini")
    a("v_readfirstlane_b32 s4, %s\ns_cmp_lg_u32 s4, 0\ns_cbranch_scc1 %s" % (v(VFLAG), lab))
    poll(a, "v_mov_b32 v2, 0\nv_mov_b32 v3, 1", srd_code=lambda: srd(a, SRD_D, P_DBG, 0, 256))
    a.label(lab)
    a("s_barrier")
    a("s_mov_b32 %s, %s" % (s(S_T0 + 8), s(S_CT)))
    tile_ids_small(a, 4)
    a("s_lshl_b32 %s, %s, 7" % (s(s_colb), s(S_CT)))
    small_addr_w(a, VW, 2, 1024, s_colb)
    srd(a, SRD_W, P_W2, 0, D * D * 2)
    for st in range(4):
        a("s_mov_b32 %s, %d" % (s(S_WO), st * 131072))
        P.part(st, "w", [VW + j for j in range(4)], s(S_WO), SRD_W)
    a("s_lshl_b32 %s, %s, 6" % (s(s_row0), s(S_RT)))
    small_addr_x(a, VX, 2, s_row0, LDA)
    srd(a, SRD_X, P_WS, WS_H, SZ_PAD)
    lab = a.new("nok1")
    a("s_cmp_lt_u32 %s, 4\ns_cbranch_scc1 %s\ns_cmp_ge_u32 %s, 12\ns_cbranch_scc1 %s" % (s(S_T0 + 8), lab, s(S_T0 + 8), lab))
    a("s_barrier")
    a.label(lab)
    stamp(a, 5)
    def poll_h():
        a("s_lshr_b32 s6, %s, 1" % s(S_RT))
        a("s_add_u32 s5, s6, 1\ns_min_u32 s5, s5, 15")
        a("s_sub_u32 s7, s6, 1\ns_max_i32 s7, s7, 0")
        a("s_bitcmp1_b32 %s, 0\ns_cselect_b32 s5, s5, s7" % s(S_RT))
        a("s_lshl_b32 %s, s6, 8\ns_lshl_b32 %s, s5, 8" % (s(S_SY + 1), s(S_SY + 2)))
        poll(a, "v_mov_b32 v2, %s\nv_mov_b32 v3, %s\nv_cmp_eq_u32 vcc, 1, v0\ns_nop 1\nv_cndmask_b32 v2, v2, v3, vcc\nv_add_u32 v2, %d, v2\nv_mov_b32 v3, 16" % (s(S_SY + 1), s(S_SY + 2), CNT_H * 256))
    only_w0(a, poll_h)
    a("s_barrier")
    stamp(a, 7)
    pos = [-LDA, LDA + 256, -2 * LDA + 512, 2 * LDA + 768]
    def x2(st):
        for j in range(4): a("v_add_u32 %s, 0x%x, %s" % (v(VT + j), pos[st] & 0xffffffff, v(VX + j)))
        return [VT + j for j in range(4)], "0"
    KV, Z, PQ = 24, 40, 56
    vkv, vz, vpq, vl, VH = 20, 21, 22, 23, 44
    def hook2(ev, st):
        if ev == "issued" and st == 3:
            cnt_srd(a)
            a("v_and_b32 v2, 15, v0\nv_lshlrev_b32 v2, 8, v2")
            a("buffer_load_dword %s, v2, %s, 0 offen offset:%d sc1" % (v(100), s(SRD_D, 4), 0))
            P.add("hall", 1)
    producer_phase(P, 4, x2, None, 4, 4, 8, xsc=SC1, hook=hook2)
    a("s_barrier")
    stamp(a, 10)
    a("s_barrier")
    P.wait(["hall"])
    lab = a.new("hall")
    a("v_cmp_gt_u32 vcc, 16, v100\ns_nop 1\ns_cbranch_vccz %s" % lab)
    poll(a, "v_and_b32 v2, 15, v0\nv_lshlrev_b32 v2, 8, v2\nv_mov_b32 v3, 16")
    a.label(lab)
    srd(a, SRD_A, P_WS, WS_KVP, 16 * 32 * KVP_ST)
    srd(a, SRD_B, P_WS, WS_PQ, SZ_ACT)
    srd(a, SRD_C, P_WS, WS_O, SZ_ACT)
    a("s_and_b32 s6, s2, 31")
    a("s_lshl_b32 s7, %s, 7\ns_add_u32 s7, s7, s6\ns_mul_i32 %s, s7, %d" % (s(S_PW), s(S_SY + 1), KVP_ST))
    a("v_and_b32 v2, 15, v0\nv_lshrrev_b32 v3, 4, v0")
    a("v_lshlrev_b32 %s, 6, v2" % v(vkv))
    a("v_lshl_add_u32 %s, v3, 4, %s" % (v(vkv), v(vkv)))
    a("v_bfe_u32 v4, v0, 2, 2\nv_mul_u32_u24 v4, %d, v4\nv_and_b32 v5, 3, v0\nv_lshl_add_u32 %s, v5, 4, v4\nv_add_u32 %s, 1024, %s" % (32 * KVP_ST, v(vz), v(vz), v(vz)))
    a("s_lshr_b32 s4, s2, 5\ns_lshl_b32 s4, s4, 8\ns_lshl_b32 s5, %s, 6\ns_add_u32 s4, s4, s5" % s(S_PW))
    a("v_add_u32 v2, s4, v2\nv_and_b32 v4, 1, v3\nv_lshl_add_u32 v2, v4, 4, v2\nv_lshlrev_b32 v2, 5, v2\nv_lshrrev_b32 v4, 1, v3\nv_lshl_add_u32 v2, v4, 4, v2")
    a("s_lshl_b32 s6, s6, 16")
    a("v_add_u32 %s, s6, v2" % v(vpq))
    for p in range(4):
        a("s_add_u32 s4, %s, %d" % (s(S_SY + 1), p * 32 * KVP_ST))
        a("buffer_load_dwordx4 %s, %s, %s, s4 offen sc1" % (v(KV + 4 * p, 4), v(vkv), s(SRD_A, 4)))
    a("buffer_load_dwordx4 %s, %s, %s, %s offen sc1" % (v(Z, 4), v(vz), s(SRD_A, 4), s(S_SY + 1)))
    for pr in range(2):
        a("buffer_load_dwordx4 %s, %s, %s, 0 offen offset:%d sc1" % (v(PQ + 4 * pr, 4), v(vpq), s(SRD_B, 4), pr * 1024))
    P.add("oj", 7)
    tile_ids_big(a, "2x16", False)
    lw4, lwo, lwd, lws = a.new("pw4"), a.new("pwo"), a.new("pwd"), a.new("pws")
    a("s_cmp_eq_u32 %s, 15\ns_cbranch_scc1 %s" % (s(S_CT), lw4))
    a("s_lshl_b32 %s, %s, 7" % (s(s_row0), s(S_RT)))
    a("s_mov_b32 %s, 64\ns_mov_b32 %s, 32" % (s(s_A), s(s_B)))
    a("s_cmp_ge_u32 %s, 11\ns_cbranch_scc1 %s" % (s(S_CT), lwo))
    a("s_mov_b32 %s, %d\ns_mov_b32 %s, 32\ns_mov_b32 %s, %d\ns_lshl_b32 %s, %s, 8\ns_mov_b32 %s, 128" % (s(s_rs), LDA, s(s_ca), s(s_ldw), F * 2, s(s_colb), s(S_CT), s(s_xs)))
    srd(a, SRD_W, P_W3, 0, D * F * 2)
    srd(a, SRD_X, P_WS, WS_X1, SZ_PAD)
    a("s_branch %s" % lws)
    a.label(lwo)
    a("s_mov_b32 %s, 32\ns_mov_b32 %s, 65536\ns_mov_b32 %s, 1024\ns_sub_u32 %s, %s, 11\ns_lshl_b32 %s, %s, 8\ns_mov_b32 %s, 262144" % (s(s_rs), s(s_ca), s(s_ldw), s(s_colb), s(S_CT), s(s_colb), s(s_colb), s(s_xs)))
    srd(a, SRD_W, P_WO, 0, D * D * 2)
    srd(a, SRD_X, P_WS, WS_O, SZ_ACT)
    a.label(lws)
    big_addr_w(a, VW, 2, s_ldw, s_colb, s_A, s_B)
    lm = a.new("p3m")
    a("s_cmp_lg_u32 %s, 10\ns_cbranch_scc1 %s" % (s(S_CT), lm))
    a("v_lshrrev_b32 v2, 4, v0\nv_bfe_u32 v3, v0, 1, 3\nv_xor_b32 v2, v2, v3\nv_xor_b32 v3, 4, v2\nv_mov_b32 v4, 0x%x" % OOB)
    a("v_cmp_le_u32 vcc, 6, v2\ns_nop 1")
    a("v_cndmask_b32 %s, %s, v4, vcc\nv_cndmask_b32 %s, %s, v4, vcc" % (v(VW), v(VW), v(VW + 1), v(VW + 1)))
    a("v_cmp_le_u32 vcc, 6, v3\ns_nop 1")
    a("v_cndmask_b32 %s, %s, v4, vcc\nv_cndmask_b32 %s, %s, v4, vcc" % (v(VW + 2), v(VW + 2), v(VW + 3), v(VW + 3)))
    a.label(lm)
    a("s_lshl_b32 %s, %s, 6" % (s(s_ws), s(s_ldw)))
    ops0 = list(P.ops)
    for st in range(4):
        r, o = std_w(a, 8, False)(st)
        P.part(st, "w", r, o, SRD_W)
    big_addr_x(a, VX, 2, s_row0, s_rs, s_ca)
    a("s_branch %s" % lwd)
    a.label(lw4)
    ops1 = list(P.ops); P.ops = list(ops0)
    w4_setup(a)
    for st in range(4):
        r, o = w4_prep(a)(st)
        P.part(st, "w", r, o, SRD_W)
    assert P.ops == ops1
    a.label(lwd)
    P.wait(["oj"])
    for (x, y) in ((0, 2), (1, 3), (0, 1)):
        for i in range(2):
            a("v_pk_add_f32 %s, %s, %s" % (v(KV + 4 * x + 2 * i, 2), v(KV + 4 * x + 2 * i, 2), v(KV + 4 * y + 2 * i, 2)))
    for rot in (8, 4):
        for i in range(4):
            a("v_add_f32_dpp %s, %s, %s row_ror:%d row_mask:0xf bank_mask:0xf" % (v(Z + i), v(Z + i), v(Z + i), rot))
        a("s_nop 1")
    a("s_lshl_b32 s4, %s, 11\ns_add_u32 s4, s4, 0x%x" % (s(S_PW), SCR))
    a("v_lshl_add_u32 %s, v0, 4, s4" % v(vl))
    a("ds_write_b128 %s, %s" % (v(vl), v(KV, 4)))
    set_exec(a, 0xf)
    a("ds_write_b128 %s, %s offset:1024" % (v(vl), v(Z, 4)))
    full_exec(a)
    a("s_waitcnt lgkmcnt(0)")
    a("s_barrier")
    a("v_lshlrev_b32 %s, 4, v0\nv_add_u32 %s, 0x%x, %s" % (v(vl), v(vl), SCR, v(vl)))
    a("v_lshrrev_b32 v2, 4, v0\nv_lshlrev_b32 v2, 4, v2\nv_add_u32 v2, 0x%x, v2" % (SCR + 1024))
    for p in range(4):
        a("ds_read_b128 %s, %s offset:%d" % (v(KV + 4 * p, 4), v(vl), p * 2048))
        a("ds_read_b128 %s, v2 offset:%d" % (v(Z + 4 * p, 4), p * 2048))
    for pr in range(2): swap_pair(a, PQ + 4 * pr)
    a("s_waitcnt lgkmcnt(0)")
    for base in (KV, Z):
        for (x, y) in ((0, 2), (1, 3), (0, 1)):
            for i in range(2):
                a("v_pk_add_f32 %s, %s, %s" % (v(base + 4 * x + 2 * i, 2), v(base + 4 * x + 2 * i, 2), v(base + 4 * y + 2 * i, 2)))
    opk, opz = 64, 66
    a("v_cvt_pk_bf16_f32 %s, %s, %s" % (v(opk), v(KV), v(KV + 1)))
    a("v_cvt_pk_bf16_f32 %s, %s, %s" % (v(opk + 1), v(KV + 2), v(KV + 3)))
    a("v_cvt_pk_bf16_f32 %s, %s, %s" % (v(opz), v(Z), v(Z + 1)))
    a("v_cvt_pk_bf16_f32 %s, %s, %s" % (v(opz + 1), v(Z + 2), v(Z + 3)))
    a("s_nop 1")
    N, Dn = 68, 84
    for tb in range(4):
        a("v_mfma_f32_16x16x16_bf16 %s, %s, %s, 0" % (v(N + 4 * tb, 4), v(opk, 2), v(PQ + 2 * tb, 2)))
        a("v_mfma_f32_16x16x16_bf16 %s, %s, %s, 0" % (v(Dn + 4 * tb, 4), v(opz, 2), v(PQ + 2 * tb, 2)))
    mfma_drain(a)
    for tb in range(4):
        a("v_add_f32 %s, %s, %s" % (v(Dn + 4 * tb), fh(1e-6), v(Dn + 4 * tb)))
    for tb in range(4):
        a("v_rcp_f32 %s, %s" % (v(Dn + 4 * tb), v(Dn + 4 * tb)))
    a("s_nop 0")
    for tb in range(4):
        for i in range(2):
            a("v_pk_mul_f32 %s, %s, %s op_sel_hi:[1,0]" % (v(N + 4 * tb + 2 * i, 2), v(N + 4 * tb + 2 * i, 2), v(Dn + 4 * tb, 2)))
    for tb in range(4):
        a("v_cvt_pk_bf16_f32 %s, %s, %s" % (v(PQ + 2 * tb), v(N + 4 * tb), v(N + 4 * tb + 1)))
        a("v_cvt_pk_bf16_f32 %s, %s, %s" % (v(PQ + 2 * tb + 1), v(N + 4 * tb + 2), v(N + 4 * tb + 3)))
    a("s_nop 1")
    for pr in range(2):
        swap_pair(a, PQ + 4 * pr)
        a("buffer_store_dwordx4 %s, %s, %s, 0 offen offset:%d sc1" % (v(PQ + 4 * pr, 4), v(vpq), s(SRD_C, 4), pr * 1024))
    P.wait_all()
    lab = a.new("osig")
    a("s_mov_b64 exec, 1")
    a("v_mov_b32 v2, 0x%x\nv_mov_b32 v3, 1" % (LCNT + 4 * 3))
    a("ds_add_rtn_u32 v4, v2, v3")
    a("s_waitcnt lgkmcnt(0)")
    a("v_readfirstlane_b32 s4, v4")
    a("s_mov_b64 exec, -1")
    a("s_cmp_eq_u32 s4, 3\ns_cbranch_scc0 %s" % lab)
    signal(a, "s_lshr_b32 s4, s2, 5\ns_add_u32 s4, s4, %d" % CNT_O)
    a.label(lab)
    stamp(a, 12)
    a("s_cmp_eq_u32 %s, 15\ns_cbranch_scc1 p4_wait" % s(S_CT))
    def poll3():
        a("s_add_u32 s5, %s, %d\ns_lshl_b32 s5, s5, 8" % (s(S_RT), CNT_X1))
        a("s_lshr_b32 s6, %s, 1\ns_add_u32 s6, s6, %d\ns_lshl_b32 s6, s6, 8" % (s(S_RT), CNT_O))
        a("s_cmp_ge_u32 %s, 11\ns_cselect_b32 %s, s6, s5\ns_cselect_b32 %s, 32, 16" % (s(S_CT), s(S_SY + 2), s(S_SY + 3)))
        a("s_mov_b32 %s, s5" % s(S_SY + 1))
        poll(a, "v_mov_b32 v2, %s\nv_mov_b32 v4, %s\nv_mov_b32 v3, 16\nv_mov_b32 v5, %s\nv_cmp_eq_u32 vcc, 1, v0\ns_nop 1\nv_cndmask_b32 v2, v2, v4, vcc\nv_cndmask_b32 v3, v3, v5, vcc" % (s(S_SY + 1), s(S_SY + 2), s(S_SY + 3)))
    only_w0(a, poll3)
    a("s_barrier")
    stamp(a, 13)
    VRES, VRES1 = 24, 28
    def res_part(slot, srd_, half):
        ld = LDA if srd_ == SRD_B else 1024
        a("s_add_u32 %s, %s, %d" % (s(S_XO), s(S_T0 + 8), half * 64 * ld))
        P.part(slot, "x", [(VRES1 if srd_ == SRD_B else VRES) + j for j in range(4)], s(S_XO), srd_, SC1 if srd_ == SRD_B else "")
        P.ops[-4:] = ["res"] * 4
    def hook3(ev, st):
        if ev == "prewait" and st == 6:
            lab = a.new("nres")
            a("s_cmp_lt_u32 %s, 11\ns_cbranch_scc1 %s" % (s(S_CT), lab))
            ops = list(P.ops)
            srd(a, SRD_A, P_X, 0, SZ_ACT)
            srd(a, SRD_B, P_WS, WS_X1, SZ_PAD)
            small_addr_x(a, VRES, 2, s_row0, 1024)
            small_addr_x(a, VRES1, 2, s_row0, LDA)
            a("s_sub_u32 %s, %s, 11\ns_lshl_b32 %s, %s, 8" % (s(S_T0 + 8), s(S_CT), s(S_T0 + 8), s(S_T0 + 8)))
            res_part(0, SRD_A, 0)
            P.ops = ops
            a.label(lab)
        if ev == "prewait" and st == 7:
            lab, lab2 = a.new("nres"), a.new("nresd")
            a("s_cmp_lt_u32 %s, 11\ns_cbranch_scc1 %s" % (s(S_CT), lab))
            ops = list(P.ops)
            res_part(1, SRD_A, 1)
            P.ops = ops
            a("s_waitcnt vmcnt(8)")
            a("s_branch %s" % lab2)
            a.label(lab)
            a("s_waitcnt vmcnt(0)")
            a.label(lab2)
            P.ops = []
    producer_phase(P, 8, std_x(a, 8, False), std_w(a, 8, False), 4, 4, 14, xsc=SC1, hook=hook3)
    lab = a.new("nres2")
    a("s_cmp_lt_u32 %s, 11\ns_cbranch_scc1 %s" % (s(S_CT), lab))
    res_part(2, SRD_B, 0)
    a.label(lab)
    a("s_barrier")
    lab = a.new("nres3")
    a("s_cmp_lt_u32 %s, 11\ns_cbranch_scc1 %s" % (s(S_CT), lab))
    res_part(3, SRD_B, 1)
    a("s_waitcnt vmcnt(0)")
    a.label(lab)
    P.ops = []
    a("s_barrier")
    w4_setup(a)
    for st in range(4):
        r, o = w4_prep(a)(st)
        P.part(st, "w", r, o, SRD_W)
    a.label("p4_wait")
    tile_ids_small(a, 11)
    a("s_lshl_b32 %s, %s, 6" % (s(s_row0), s(S_RT)))
    small_addr_x(a, VX, 2, s_row0, LDG)
    srd(a, SRD_X, P_WS, WS_G, S * LDG)
    stamp(a, 18)
    def poll4():
        a("s_lshr_b32 s5, %s, 1\ns_add_u32 s5, s5, %d\ns_lshl_b32 %s, s5, 8" % (s(S_RT), CNT_G, s(S_SY + 1)))
        poll(a, "v_mov_b32 v2, %s\nv_mov_b32 v3, 15" % s(S_SY + 1))
    only_w0(a, poll4)
    a("s_barrier")
    stamp(a, 19)
    def x4(st):
        a("s_mov_b32 %s, %d" % (s(S_XO), st * 256))
        return [VX + j for j in range(4)], s(S_XO)
    P.ops = []
    producer_phase(P, 11, x4, w4_prep(a), 4, 4, 20, xsc=SC1)
    endk(a)

def generate():
    a = Asm()
    head = ["; x + linear-attention block + mixer/shift MLP for gfx950: one persistent launch, four GEMM phases.",
            "; Generated by my own generator script.",
            "; @launch grid=(256,1,1) block=(512,1,1) lds=%d" % LDS_ALL,
            '.amdgcn_target "amdgcn-amd-amdhsa--gfx950"\n.text']
    kernel_head(a, KNAME, 256)
    a("s_load_dwordx16 s[36:51], s[0:1], 0")
    a("s_load_dwordx4 s[52:55], s[0:1], 64")
    a("s_load_dwordx2 s[56:57], s[0:1], 80")
    wave_id(a)
    if OPT.prof: a("v_mov_b32 %s, 0" % v(V_ST))
    stamp(a, 0, True); stamp(a, 1)
    if getattr(OPT, "dbgtime", False):
        a("s_memrealtime s[94:95]\ns_memtime s[96:97]")
    tile_ids_big(a, "4x8", OPT.rot1)
    a("s_cmp_ge_u32 s3, 4\ns_cbranch_scc1 prod")
    wave_mn(a)
    hi = [c_p1(a), c_p2(a), c_p3(a), c_p4(a)]
    a.label("prod")
    p_all(a)
    kernel_tail(a, KNAME)
    nv = 256 if OPT.prof else (max(hi + [120]) + 7) // 8 * 8
    return "\n".join(head) + "\n" + a.text() + '.section .rodata,"a"\n' + descriptor(KNAME, nv)

if __name__ == "__main__":
    import argparse
    ap = argparse.ArgumentParser()
    ap.add_argument("out"); ap.add_argument("--prof", action="store_true")
    ap.add_argument("--nopf", action="store_true"); ap.add_argument("--norot1", action="store_true")
    ap.add_argument("--depth", type=int, default=2)
    ap.add_argument("--dbgtime", action="store_true")
    x = ap.parse_args()
    OPT.dbgtime = x.dbgtime
    OPT.prof = x.prof; OPT.rot = False; OPT.rot1 = not x.norot1; OPT.prefetch = not x.nopf; OPT.depth = x.depth
    open(x.out, "w").write(generate())
    print("wrote", x.out)
```

```python
import sys, math
sys.path.insert(0, "gen")
from asmlib import *

S, D, F = 2048, 512, 1376
FP = 1408
LDG = FP * 2
EPS = 1e-5
LOG2E = 1.4426950408889634
GC0 = 2.0 * math.sqrt(2.0 / math.pi)
KA_X, KA_WQKV, KA_WO, KA_BX, KA_W1, KA_W2, KA_W3, KA_W4, KA_OUT, KA_DBG, KA_WS = [8 * i for i in range(11)]
MB = 1 << 20
WS_CNT  = 0
WS_XST  = 0x4000
WS_X1ST = 0x8000
WS_KVP  = 0x40000
KVP_ST  = 1088
WS_PQ   = 0x100000
WS_O    = 0x300000
WS_H    = 0x500000
WS_X1   = 0x740000
WS_G    = 0x980000
WS_BASE = 0x1000000
SZ_ACT  = S * D * 2
LDA = 1152
SZ_PAD = S * LDA
OOB = 0x40000000

SLOT = 32768
TAB = 4 * SLOT
TAB_M, TAB_R, TAB_C = TAB, TAB + 512, TAB + 1024
SCR = TAB + 2048
LCNT = SCR + 8192
STG = LCNT + 256
LDS_ALL = STG + 16384
LDS_BIG = TAB + 2048
OJ_SCR = 4 * SLOT
LDS_P2 = 4 * SLOT + 8192
LDS_SMALL = 4 * SLOT

S_WAVE = 3
SRD_X, SRD_W, SRD_A, SRD_B, SRD_C, SRD_D = 8, 12, 16, 20, 24, 28
S_RT, S_CT, S_WM, S_WN = 32, 33, 34, 35
P_X, P_WQKV, P_WO, P_BX, P_W1, P_W2, P_W3, P_W4, P_OUT, P_DBG, P_WS = 36, 38, 40, 42, 44, 46, 48, 50, 52, 54, 56
S_ROT, S_G, S_XO, S_WO = 58, 59, 60, 61
S_T0 = 62
S_PW = 71
S_EP = 72
S_PP = 78
S_M0B = 87
S_SY = 88
S_ST = 92
V_ST = 255
CNT_H, CNT_X1, CNT_O, CNT_G = 0, 16, 32, 40
NCNT = 56
SPIN_MAX = 200000
SC1 = " sc1"

class Opt:
    prof = False
    rot = True
    prefetch = True
    l2pf = True
    rot1 = True
    depth = 3
OPT = Opt()
WS_PROF = 64 * MB

def stamp(a, i, real=False):
    if OPT.prof:
        a("%s %s" % ("s_memrealtime" if real else "s_memtime", s(S_ST, 2)))
        a("s_waitcnt lgkmcnt(0)")
        a("v_writelane_b32 %s, %s, %d" % (v(V_ST), s(S_ST), i))
def stamp_flush(a):
    if not OPT.prof: return
    stamp(a, 62); stamp(a, 63, True)
    a("s_add_u32 s4, %s, 0x%x\ns_addc_u32 s5, %s, 0" % (s(P_WS), WS_PROF, s(P_WS + 1)))
    a("s_lshl_b32 s6, s2, 3\ns_add_u32 s6, s6, s3\ns_lshl_b32 s6, s6, 8")
    a("s_mov_b64 exec, -1")
    a("v_lshl_add_u32 v4, v0, 2, s6")
    a("global_store_dword v4, %s, s[4:5]" % v(V_ST))
    a("s_waitcnt vmcnt(0)")
def endk(a):
    stamp_flush(a)
    a("s_endpgm")

def srd(a, reg, plo, off, size):
    if off:
        a("s_add_u32 %s, %s, 0x%x" % (s(reg), s(plo), off))
        a("s_addc_u32 %s, %s, 0" % (s(reg + 1), s(plo + 1)))
    else:
        a("s_mov_b32 %s, %s" % (s(reg), s(plo)))
        a("s_mov_b32 %s, %s" % (s(reg + 1), s(plo + 1)))
    a("s_mov_b32 %s, 0x%x" % (s(reg + 2), size))
    a("s_mov_b32 %s, 0x00020000" % s(reg + 3))

def kernel_head(a, name, nwg):
    a.raw(".globl %s\n.p2align 8\n.type %s,@function\n%s:" % (name, name, name))
    a("s_cmp_ge_u32 s2, %d" % nwg)
    a("s_cbranch_scc1 %s_exit" % name)
def kernel_tail(a, name):
    a.label("%s_exit" % name)
    a("s_endpgm")
def descriptor(name, vgpr, sgpr=100):
    return """.p2align 6
.amdhsa_kernel %s
  .amdhsa_next_free_vgpr %d
  .amdhsa_next_free_sgpr %d
  .amdhsa_accum_offset %d
  .amdhsa_group_segment_fixed_size 0
  .amdhsa_kernarg_size 88
  .amdhsa_user_sgpr_count 2
  .amdhsa_user_sgpr_kernarg_segment_ptr 1
  .amdhsa_system_sgpr_workgroup_id_x 1
  .amdhsa_float_denorm_mode_32 3
.end_amdhsa_kernel
""" % (name, vgpr, sgpr, (vgpr + 3) // 4 * 4)

def wave_id(a):
    a("v_lshrrev_b32 v1, 6, v0")
    a("v_and_b32 v0, 63, v0")
    a("v_readfirstlane_b32 s3, v1")

def tile_ids_big(a, mode, rot):
    a("s_and_b32 s4, s2, 7\ns_lshr_b32 s5, s2, 3")
    if mode == "4x8":
        a("s_lshr_b32 s6, s4, 1\ns_lshl_b32 s6, s6, 2\ns_and_b32 s7, s5, 3\ns_add_u32 %s, s6, s7" % s(S_RT))
        a("s_and_b32 s6, s4, 1\ns_lshl_b32 s6, s6, 3\ns_lshr_b32 s5, s5, 2\ns_add_u32 %s, s6, s5" % s(S_CT))
        if rot: a("s_lshl_b32 s7, s7, 1\ns_add_u32 s7, s7, s5\ns_and_b32 %s, s7, 7" % s(S_ROT))
    else:
        a("s_lshl_b32 s6, s4, 1\ns_and_b32 s7, s5, 1\ns_add_u32 %s, s6, s7" % s(S_RT))
        a("s_lshr_b32 %s, s5, 1" % s(S_CT))
        if rot: a("s_lshl_b32 s7, s7, 2\ns_lshr_b32 s6, %s, 1\ns_add_u32 s7, s7, s6\ns_and_b32 %s, s7, 7" % (s(S_CT), s(S_ROT)))
    if not rot: a("s_mov_b32 %s, 0" % s(S_ROT))
def tile_ids_small(a, nst):
    a("s_and_b32 s4, s2, 7\ns_lshr_b32 s5, s2, 3")
    a("s_lshl_b32 s6, s4, 2\ns_and_b32 s7, s5, 3\ns_add_u32 %s, s6, s7" % s(S_RT))
    a("s_lshr_b32 %s, s5, 2" % s(S_CT))
    if not OPT.rot:
        a("s_mov_b32 %s, 0" % s(S_ROT))
    elif nst == 4:
        a("s_add_u32 s7, s7, %s\ns_and_b32 %s, s7, 3" % (s(S_CT), s(S_ROT)))
    else:
        a("s_mul_i32 s7, s7, 3\ns_add_u32 s7, s7, %s\ns_sub_u32 s6, s7, %d\ns_cmp_ge_u32 s7, %d\ns_cselect_b32 %s, s6, s7" % (s(S_CT), nst, nst, s(S_ROT)))
def wave_mn(a):
    a("s_lshr_b32 %s, s3, 1\ns_and_b32 %s, s3, 1" % (s(S_WM), s(S_WN)))

def stage_index(a, st, nst):
    a("s_add_u32 %s, %s, %d" % (s(S_G), s(S_ROT), st))
    if nst & (nst - 1) == 0:
        a("s_and_b32 %s, %s, %d" % (s(S_G), s(S_G), nst - 1))
    else:
        a("s_sub_u32 s4, %s, %d\ns_cmp_ge_u32 %s, %d\ns_cselect_b32 %s, s4, %s" % (s(S_G), nst, s(S_G), nst, s(S_G), s(S_G)))

class Prod:
    def __init__(self, a): self.a = a; self.ops = []
    def add(self, tag, n): self.ops.extend([tag] * n)
    def wait(self, tags):
        idx = [i for i, t in enumerate(self.ops) if t in tags]
        if not idx: return
        n = len(self.ops) - 1 - max(idx)
        assert n <= 63, n
        self.a("s_waitcnt vmcnt(%d)" % n)
        self.ops = self.ops[max(idx) + 1:]
    def wait_all(self):
        self.a("s_waitcnt vmcnt(0)"); self.ops = []
    def part(self, st, which, regs, soff, srd_, sc=""):
        a = self.a
        slot = (st % 4) * SLOT + (16384 if which == "w" else 0)
        for j in range(4):
            a("s_add_u32 m0, %s, 0x%x" % (s(S_M0B), slot + j * 1024))
            a("s_nop 0")
            a("buffer_load_dwordx4 %s, %s, %s offen%s lds" % (v(regs[j]), s(srd_, 4), soff, sc))
        self.add((which, st), 4)

def producer_phase(P, nst, prep_x, prep_w, wpre, depth, stamp0, xsc="", hook=None):
    a = P.a
    def issue(st):
        r, o = prep_x(st); P.part(st, "x", r, o, SRD_X, xsc)
        if st >= wpre:
            r, o = prep_w(st); P.part(st, "w", r, o, SRD_W)
        if hook: hook("issued", st)
    nxt = 0
    for st in range(min(depth, nst)):
        issue(st); nxt += 1
    for st in range(nst):
        if hook: hook("prewait", st)
        P.wait([("x", st), ("w", st)])
        if hook: hook("prebar", st)
        a("s_barrier")
        if st == 0: stamp(a, stamp0)
        if st == nst - 1: stamp(a, stamp0 + 1)
        if nxt < nst and nxt <= st + 3:
            issue(nxt); nxt += 1

def mainloop(a, nst, reads, mfmas, stamp0, last_barrier=True, inject=None):
    stamp(a, stamp0)
    a("s_barrier")
    stamp(a, stamp0 + 1)
    for r in reads(0, 0, 0): a(r)
    nsteps = 2 * nst
    for n in range(nsteps):
        st, k = n // 2, n % 2
        a("s_waitcnt lgkmcnt(0)")
        if k == 1 and (st + 1 < nst or last_barrier):
            a("s_barrier")
        rd = []
        if n + 1 < nsteps:
            rd = reads((n + 1) // 2, (n + 1) % 2, (n + 1) % 2)
        mf = mfmas(n % 2, n == 0)
        if inject and n in inject:
            rd = rd + inject[n]
        i = 0
        per = max(1, -(-len(rd) // max(1, len(mf))))
        for m in mf:
            a(m)
            for _ in range(per):
                if i < len(rd):
                    a(rd[i]); i += 1
        while i < len(rd):
            a(rd[i]); i += 1
    stamp(a, stamp0 + 2)

def cnt_srd(a):
    srd(a, SRD_D, P_WS, WS_CNT, NCNT * 256)

def signal(a, idx_sgpr_code, vt=2):
    cnt_srd(a)
    a(idx_sgpr_code)
    a("s_lshl_b32 s4, s4, 8")
    a("v_mov_b32 %s, s4\nv_mov_b32 %s, 1" % (v(vt), v(vt + 1)))
    a("s_mov_b64 exec, 1")
    a("buffer_atomic_add %s, %s, %s, 0 offen" % (v(vt + 1), v(vt), s(SRD_D, 4)))
    a("s_mov_b64 exec, -1")

def poll(a, setup_code, vt=2, srd_code=None):
    if srd_code: srd_code()
    else: cnt_srd(a)
    a(setup_code)
    lab, done = a.new("poll"), a.new("polled")
    a("s_mov_b32 %s, 0" % s(S_SY))
    a.label(lab)
    a("buffer_load_dword %s, %s, %s, 0 offen sc1" % (v(vt + 2), v(vt), s(SRD_D, 4)))
    a("s_waitcnt vmcnt(0)")
    a("v_cmp_lt_u32 vcc, %s, %s" % (v(vt + 2), v(vt + 1)))
    a("s_add_u32 %s, %s, 1" % (s(S_SY), s(S_SY)))
    a("s_cmp_ge_u32 %s, %d" % (s(S_SY), SPIN_MAX))
    a("s_cbranch_scc1 %s" % done)
    a("s_cbranch_vccz %s" % done)
    a("s_sleep 1")
    a("s_branch %s" % lab)
    a.label(done)

def mm(d, A, B, zero=False):
    return "v_mfma_f32_16x16x32_bf16 %s, %s, %s, %s" % (v(d, 4), v(A, 4), v(B, 4), "0" if zero else v(d, 4))

class Big:
    def __init__(self, R, gram, cs):
        self.vxa = R.alloc(8); self.vwa = R.alloc(8)
        self.xf = [R.alloc(16, 4), None]; self.wf = [R.alloc(16, 4), None]
        self.xf[1] = R.alloc(16, 4); self.wf[1] = R.alloc(16, 4)
        self.acc = R.alloc(64, 4)
        self.gram = R.alloc(8, 4) if gram else None
        self.rs = R.alloc(8, 4) if gram else None
        self.cs = R.alloc(8, 4) if cs else None
        self.ones = R.alloc(4, 4) if (gram or cs) else None
        self.zero_first = True
        self.use_cs = cs
    def A(self, ltb, lf): return self.acc + (ltb * 4 + lf) * 4
    def setup(self, a, t0):
        vt, vq, vf, vtmp, vg, vk = t0, t0 + 1, t0 + 2, t0 + 3, t0 + 4, t0 + 5
        a("v_and_b32 %s, 15, v0" % v(vt))
        a("v_lshrrev_b32 %s, 4, v0" % v(vq))
        a("v_bfe_u32 %s, v0, 1, 3" % v(vf))
        a("s_lshl_b32 %s, %s, 13" % (s(S_T0), s(S_WM)))
        a("s_lshl_b32 %s, %s, 12" % (s(S_T0 + 1), s(S_WN)))
        a("s_xor_b32 %s, %s, 0x1000" % (s(S_T0 + 2), s(S_T0 + 1)))
        a("s_add_u32 %s, %s, %s" % (s(S_T0 + 1), s(S_T0 + 1), s(S_T0)))
        a("s_add_u32 %s, %s, %s" % (s(S_T0 + 2), s(S_T0 + 2), s(S_T0)))
        a("v_xor_b32 %s, %s, %s" % (v(vtmp), v(vq), v(vf)))
        a("v_lshlrev_b32 %s, 4, %s" % (v(vtmp), v(vtmp)))
        a("v_lshl_add_u32 %s, %s, 7, %s" % (v(vtmp), v(vt), v(vtmp)))
        for grp in range(2):
            r0 = self.vxa + grp * 2; r1 = self.vxa + 4 + grp * 2
            a("v_add_u32 %s, %s, %s" % (v(r0), s(S_T0 + 1 + grp), v(vtmp)))
            a("v_xor_b32 %s, 64, %s" % (v(r1), v(r0)))
            a("v_add_u32 %s, 0x10000, %s" % (v(r0 + 1), v(r0)))
            a("v_add_u32 %s, 0x10000, %s" % (v(r1 + 1), v(r1)))
        a("v_bfe_u32 %s, v0, 2, 2" % v(vf))
        a("v_and_b32 %s, 1, %s" % (v(vg), v(vq)))
        a("v_lshl_or_b32 %s, %s, 2, %s" % (v(vg), v(vg), v(vf)))
        a("v_lshl_add_u32 %s, %s, 3, %s" % (v(vk), v(vq), v(vf)))
        a("v_lshlrev_b32 %s, 8, %s" % (v(vk), v(vk)))
        a("v_and_b32 %s, 3, v0" % v(vtmp))
        a("v_lshl_add_u32 %s, %s, 3, %s" % (v(vk), v(vtmp), v(vk)))
        a("v_add_u32 %s, 0x4000, %s" % (v(vk), v(vk)))
        a("s_lshl_b32 %s, %s, 2" % (s(S_T0), s(S_WN)))
        a("s_lshl_b32 %s, %s, 1" % (s(S_T0 + 1), s(S_WM)))
        a("s_add_u32 %s, %s, %s" % (s(S_T0), s(S_T0), s(S_T0 + 1)))
        a("v_xor_b32 %s, %s, %s" % (v(vtmp), s(S_T0), v(vg)))
        a("v_lshl_add_u32 %s, %s, 5, %s" % (v(self.vwa), v(vtmp), v(vk)))
        for lf in range(1, 4):
            a("v_xor_b32 %s, %d, %s" % (v(self.vwa + 2 * lf), lf * 32, v(self.vwa)))
        for lf in range(4):
            a("v_add_u32 %s, 0x10000, %s" % (v(self.vwa + 2 * lf + 1), v(self.vwa + 2 * lf)))
        if self.ones is not None:
            for i in range(4): a("v_mov_b32 %s, 0x3f803f80" % v(self.ones + i))
    def reads(self, st, kk, set_):
        slot = st % 4; hi = slot >> 1; off = (slot & 1) * SLOT
        out = []
        for i in range(4):
            out.append("ds_read_b128 %s, %s offset:%d" % (v(self.xf[set_] + i * 4, 4), v(self.vxa + kk * 4 + (i >> 1) * 2 + hi), off + (i & 1) * 2048))
            for hh in range(2):
                out.append("ds_read_b64_tr_b16 %s, %s offset:%d" % (v(self.wf[set_] + i * 4 + hh * 2, 2), v(self.vwa + i * 2 + hi), off + kk * 8192 + hh * 1024))
        return out
    def mfmas(self, set_, first, swapped):
        out = []
        xf, wf = self.xf[set_], self.wf[set_]
        for ltb in range(4):
            for lf in range(4):
                z = first and self.zero_first
                if swapped: out.append(mm(self.A(ltb, lf), wf + 4 * lf, xf + 4 * ltb, z))
                else:       out.append(mm(self.A(ltb, lf), xf + 4 * ltb, wf + 4 * lf, z))
        if self.gram is not None:
            for i in range(2):
                out.append(mm(self.gram + 4 * i, xf + 4 * i, xf + 4 * i, first))
                out.append(mm(self.rs + 4 * i, self.ones, xf + 4 * i, first))
        if self.use_cs:
            for i in range(2):
                out.append(mm(self.cs + 4 * i, self.ones, wf + 4 * i, first))
        return out

def u24mul(a, d, x, sreg):
    a("v_mul_u32_u24 %s, %s, %s" % (v(d), s(sreg), v(x)))

def big_addr_x(a, vx, t0, s_row0, s_rs, s_ca):
    w = S_PW
    t1, t2, t3, t4 = t0, t0 + 1, t0 + 2, t0 + 3
    a("v_lshrrev_b32 %s, 4, v0" % v(t4))
    a("v_and_b32 %s, 7, v0" % v(t1))
    a("v_xor_b32 %s, %s, %s" % (v(t1), v(t1), v(t4)))
    a("v_lshrrev_b32 %s, 1, %s" % (v(t2), v(t1)))
    a("v_xor_b32 %s, 2, %s" % (v(t3), v(t2)))
    u24mul(a, t2, t2, s_ca); u24mul(a, t3, t3, s_ca)
    a("v_and_b32 %s, 1, %s" % (v(t1), v(t1)))
    a("v_lshlrev_b32 %s, 4, %s" % (v(t1), v(t1)))
    a("v_add_u32 %s, %s, %s" % (v(t2), v(t2), v(t1)))
    a("v_add_u32 %s, %s, %s" % (v(t3), v(t3), v(t1)))
    a("s_lshl_b32 %s, %s, 5\ns_add_u32 %s, %s, %s" % (s(S_T0), s(w), s(S_T0), s(S_T0), s(s_row0)))
    a("v_lshrrev_b32 %s, 3, v0" % v(t1))
    a("v_add_u32 %s, %s, %s" % (v(t1), s(S_T0), v(t1)))
    u24mul(a, t1, t1, s_rs)
    a("s_lshl_b32 %s, %s, 3\ns_lshl_b32 %s, %s, 4" % (s(S_T0), s(s_rs), s(S_T0 + 1), s(s_rs)))
    a("v_add_u32 %s, %s, %s" % (v(vx), v(t1), v(t2)))
    a("v_add3_u32 %s, %s, %s, %s" % (v(vx + 1), v(t1), v(t3), s(S_T0)))
    a("v_add_u32 %s, %s, %s" % (v(vx + 2), s(S_T0 + 1), v(vx)))
    a("v_add_u32 %s, %s, %s" % (v(vx + 3), s(S_T0 + 1), v(vx + 1)))
def big_addr_w(a, vw, t0, s_ldw, s_colb, s_A, s_B):
    w = S_PW
    t1, t2, t3, t4 = t0, t0 + 1, t0 + 2, t0 + 3
    a("v_lshrrev_b32 %s, 4, v0" % v(t4))
    a("v_bfe_u32 %s, v0, 1, 3" % v(t1))
    a("v_xor_b32 %s, %s, %s" % (v(t1), v(t1), v(t4)))
    a("v_lshrrev_b32 %s, 1, %s" % (v(t2), v(t1)))
    a("v_xor_b32 %s, 2, %s" % (v(t3), v(t2)))
    u24mul(a, t2, t2, s_A); u24mul(a, t3, t3, s_A)
    a("v_and_b32 %s, 1, %s" % (v(t1), v(t1)))
    u24mul(a, t1, t1, s_B)
    a("v_and_b32 %s, 1, v0" % v(vw))
    a("v_lshl_add_u32 %s, %s, 4, %s" % (v(t1), v(vw), v(t1)))
    a("v_add3_u32 %s, %s, %s, %s" % (v(t2), v(t2), v(t1), s(s_colb)))
    a("v_add3_u32 %s, %s, %s, %s" % (v(t3), v(t3), v(t1), s(s_colb)))
    a("s_lshl_b32 %s, %s, 4" % (s(S_T0), s(w)))
    a("v_add_u32 %s, %s, %s" % (v(t1), s(S_T0), v(t4)))
    u24mul(a, t1, t1, s_ldw)
    a("s_lshl_b32 %s, %s, 2\ns_lshl_b32 %s, %s, 3" % (s(S_T0), s(s_ldw), s(S_T0 + 1), s(s_ldw)))
    a("v_add_u32 %s, %s, %s" % (v(vw), v(t1), v(t2)))
    a("v_add_u32 %s, %s, %s" % (v(vw + 1), s(S_T0), v(vw)))
    a("v_add3_u32 %s, %s, %s, %s" % (v(vw + 2), v(t1), v(t3), s(S_T0 + 1)))
    a("v_add_u32 %s, %s, %s" % (v(vw + 3), s(S_T0), v(vw + 2)))

class Small:
    def __init__(self, R):
        self.vxa = R.alloc(8); self.vwa = R.alloc(4)
        self.xf = [R.alloc(16, 4), R.alloc(16, 4)]
        self.wf = [R.alloc(16, 4), R.alloc(16, 4)]
        self.acc = R.alloc(16, 4)
    def A(self, tb, f): return self.acc + (tb * 2 + f) * 4
    def setup(self, a, t0):
        vt, vq, vb, vtmp, vg, vk = t0, t0 + 1, t0 + 2, t0 + 3, t0 + 4, t0 + 5
        a("v_and_b32 %s, 15, v0" % v(vt))
        a("v_lshrrev_b32 %s, 4, v0" % v(vq))
        a("v_xor_b32 %s, %s, %s" % (v(vb), v(vq), v(vt)))
        a("v_lshlrev_b32 %s, 4, %s" % (v(vb), v(vb)))
        a("v_lshl_add_u32 %s, %s, 8, %s" % (v(vb), v(vt), v(vb)))
        a("s_lshl_b32 %s, %s, 13" % (s(S_T0), s(S_WM)))
        a("v_add_u32 %s, %s, %s" % (v(self.vxa), s(S_T0), v(vb)))
        for kk in range(1, 4):
            a("v_xor_b32 %s, %d, %s" % (v(self.vxa + 2 * kk), kk * 64, v(self.vxa)))
        for kk in range(4):
            a("v_add_u32 %s, 0x10000, %s" % (v(self.vxa + 2 * kk + 1), v(self.vxa + 2 * kk)))
        a("v_bfe_u32 %s, v0, 2, 2" % v(vb))
        a("v_lshl_add_u32 %s, %s, 3, %s" % (v(vk), v(vq), v(vb)))
        a("v_lshlrev_b32 %s, 7, %s" % (v(vk), v(vk)))
        a("v_and_b32 %s, 3, v0" % v(vtmp))
        a("v_lshl_add_u32 %s, %s, 3, %s" % (v(vk), v(vtmp), v(vk)))
        a("v_add_u32 %s, 0x4000, %s" % (v(vk), v(vk)))
        a("v_lshrrev_b32 %s, 1, %s" % (v(vb), v(vb)))
        a("v_and_b32 %s, 1, %s" % (v(vg), v(vq)))
        a("v_lshl_or_b32 %s, %s, 1, %s" % (v(vg), v(vg), v(vb)))
        a("s_lshl_b32 %s, %s, 1" % (s(S_T0), s(S_WN)))
        a("v_xor_b32 %s, %s, %s" % (v(vtmp), s(S_T0), v(vg)))
        a("v_lshl_add_u32 %s, %s, 5, %s" % (v(self.vwa), v(vtmp), v(vk)))
        a("v_xor_b32 %s, 32, %s" % (v(self.vwa + 2), v(self.vwa)))
        for f in range(2):
            a("v_add_u32 %s, 0x10000, %s" % (v(self.vwa + 2 * f + 1), v(self.vwa + 2 * f)))
    def reads(self, st, step, set_):
        slot = st % 4; hi = slot >> 1; off = (slot & 1) * SLOT
        out = []
        for k2 in range(2):
            kk = step * 2 + k2
            for i in range(2):
                out.append("ds_read_b128 %s, %s offset:%d" % (v(self.xf[set_] + k2 * 8 + i * 4, 4), v(self.vxa + kk * 2 + hi), off + i * 4096))
                for hh in range(2):
                    out.append("ds_read_b64_tr_b16 %s, %s offset:%d" % (v(self.wf[set_] + k2 * 8 + i * 4 + hh * 2, 2), v(self.vwa + i * 2 + hi), off + kk * 4096 + hh * 512))
        return out
    def mfmas(self, set_, first):
        out = []
        for k2 in range(2):
            for tb in range(2):
                for f in range(2):
                    out.append(mm(self.A(tb, f), self.wf[set_] + k2 * 8 + f * 4, self.xf[set_] + k2 * 8 + tb * 4))
        return out

def small_addr_x(a, vx, t0, s_row0, ldx, rows_per_wave=16):
    w = S_PW
    t1, t2, t3, t4 = t0, t0 + 1, t0 + 2, t0 + 3
    a("v_lshrrev_b32 %s, 4, v0" % v(t4))
    a("v_and_b32 %s, 15, v0" % v(t2))
    a("v_xor_b32 %s, %s, %s" % (v(t2), v(t2), v(t4)))
    a("v_lshlrev_b32 %s, 4, %s" % (v(t2), v(t2)))
    a("s_lshl_b32 %s, %s, 4\ns_add_u32 %s, %s, %s" % (s(S_T0), s(w), s(S_T0), s(S_T0), s(s_row0)))
    a("v_add_u32 %s, %s, %s" % (v(t1), s(S_T0), v(t4)))
    a("s_mov_b32 %s, %d" % (s(S_T0), ldx))
    u24mul(a, t1, t1, S_T0)
    for jj in range(4):
        if jj: a("v_xor_b32 %s, %d, %s" % (v(t3), jj * 64, v(t2)))
        a("s_mov_b32 %s, %d" % (s(S_T0), jj * 4 * ldx))
        a("v_add3_u32 %s, %s, %s, %s" % (v(vx + jj), v(t1), v(t3 if jj else t2), s(S_T0)))
def small_addr_x2(a, vx, t0, s_row0, RS, CA):
    w = S_PW
    t1, t2, t3, t4 = t0, t0 + 1, t0 + 2, t0 + 3
    a("v_lshrrev_b32 %s, 4, v0" % v(t4))
    a("s_lshl_b32 %s, %s, 4\ns_add_u32 %s, %s, %s" % (s(S_T0), s(w), s(S_T0), s(S_T0), s(s_row0)))
    a("v_add_u32 %s, %s, %s" % (v(t1), s(S_T0), v(t4)))
    a("s_mov_b32 %s, %d" % (s(S_T0), RS))
    u24mul(a, t1, t1, S_T0)
    a("s_mov_b32 %s, %d" % (s(S_T0 + 1), CA))
    for jj in range(4):
        a("v_and_b32 %s, 15, v0\nv_xor_b32 %s, %s, %s" % (v(t2), v(t2), v(t2), v(t4)))
        if jj: a("v_xor_b32 %s, %d, %s" % (v(t2), jj * 4, v(t2)))
        a("v_lshrrev_b32 %s, 1, %s" % (v(t3), v(t2)))
        u24mul(a, t3, t3, S_T0 + 1)
        a("v_and_b32 %s, 1, %s\nv_lshl_add_u32 %s, %s, 4, %s" % (v(t2), v(t2), v(t3), v(t2), v(t3)))
        a("s_mov_b32 %s, %d" % (s(S_T0), jj * 4 * RS))
        a("v_add3_u32 %s, %s, %s, %s" % (v(vx + jj), v(t1), v(t3), s(S_T0)))
def small_addr_w(a, vw, t0, ldw, s_colb):
    w = S_PW
    t1, t2, t3, t4 = t0, t0 + 1, t0 + 2, t0 + 3
    a("v_bfe_u32 %s, v0, 4, 1" % v(t2))
    a("v_bfe_u32 %s, v0, 1, 2" % v(t3))
    a("v_xor_b32 %s, %s, %s" % (v(t2), v(t2), v(t3)))
    a("v_lshlrev_b32 %s, 5, %s" % (v(t2), v(t2)))
    a("v_and_b32 %s, 1, v0" % v(t3))
    a("v_lshl_add_u32 %s, %s, 4, %s" % (v(t2), v(t3), v(t2)))
    a("v_xor_b32 %s, 64, %s" % (v(t3), v(t2)))
    a("s_lshl_b32 %s, %s, 5" % (s(S_T0), s(w)))
    a("v_lshrrev_b32 %s, 3, v0" % v(t1))
    a("v_add_u32 %s, %s, %s" % (v(t1), s(S_T0), v(t1)))
    a("s_mov_b32 %s, %d" % (s(S_T0), ldw))
    u24mul(a, t1, t1, S_T0)
    a("v_add_u32 %s, %s, %s" % (v(t1), s(s_colb), v(t1)))
    for ii in range(4):
        a("s_mov_b32 %s, %d" % (s(S_T0), ii * 8 * ldw))
        a("v_add3_u32 %s, %s, %s, %s" % (v(vw + ii), v(t1), v(t3 if ii & 1 else t2), s(S_T0)))

DIAG = 0
for _q in range(4): DIAG |= 0xF << (20 * _q)
def set_exec(a, mask):
    a("s_mov_b32 exec_lo, 0x%x" % (mask & 0xffffffff))
    a("s_mov_b32 exec_hi, 0x%x" % (mask >> 32))
def full_exec(a): a("s_mov_b64 exec, -1")
def mfma_drain(a): a("s_nop 7\ns_nop 3")
def unpack_bf16(a, dlo, dhi, src):
    a("v_lshlrev_b32 %s, 16, %s" % (v(dlo), v(src)))
    a("v_and_b32 %s, 0xffff0000, %s" % (v(dhi), v(src)))
def swap_pair(a, o):
    a("v_permlane16_swap_b32 %s, %s" % (v(o), v(o + 2)))
    a("v_permlane16_swap_b32 %s, %s" % (v(o + 1), v(o + 3)))
def xlane_sum_q(a, r, t):
    a("v_mov_b32 %s, %s" % (v(t), v(r)))
    a("s_nop 1")
    a("v_permlane32_swap_b32 %s, %s" % (v(t), v(r)))
    a("s_nop 1")
    a("v_add_f32 %s, %s, %s" % (v(r), v(r), v(t)))
    a("v_mov_b32 %s, %s" % (v(t), v(r)))
    a("s_nop 1")
    a("v_permlane16_swap_b32 %s, %s" % (v(t), v(r)))
    a("s_nop 1")
    a("v_add_f32 %s, %s, %s" % (v(r), v(r), v(t)))

def pf_addr(a, vp):
    a("s_lshr_b32 s4, s2, 3\ns_lshl_b32 s4, s4, 2\ns_add_u32 s4, s4, s3\ns_sub_u32 s5, 127, s4\ns_lshl_b32 s4, s4, 13\ns_lshl_b32 s5, s5, 13")
    a("v_lshl_add_u32 %s, v0, 7, s4\nv_lshl_add_u32 %s, v0, 7, s5" % (v(vp), v(vp + 1)))
def pf_list(vp, vd, jobs):
    out = []
    n = 0
    for (ptr, nbytes, rev) in jobs:
        r = SRD_X if n % 2 == 0 else SRD_W
        cnt = -(-nbytes // (128 * 8192))
        for i in range(cnt):
            off = i * 128 * 8192
            lo = "s_add_u32 %s, %s, 0x%x\ns_addc_u32 %s, %s, 0\ns_mov_b32 %s, 0x%x\ns_mov_b32 %s, 0x00020000" % (s(r), s(ptr), off, s(r + 1), s(ptr + 1), s(r + 2), min(nbytes - off, 128 * 8192), s(r + 3))
            out.append(lo + "\nbuffer_load_dword %s, %s, %s, 0 offen" % (v(vd), v(vp + (1 if rev else 0)), s(r, 4)))
        n += 1
    return out
```

```python
import sys
sys.path.insert(0, "gen")
from g3_common import *
from g3_epi import *

KNAME = "parallel_sum__linear_attn_block__mixer_s_mlp__prompt_kernel"
s_row0, s_rs, s_ca, s_ldw, s_colb, s_A, s_B, s_xs, s_ws = [S_PP + i for i in range(9)]
VX, VW, VT = 8, 12, 16
sP, sB, sL = S_EP, S_EP + 2, S_EP + 3

def consumer_done(a, word, idx_code, younger=0):
    lab = a.new("cd")
    a("s_waitcnt vmcnt(%d)" % younger)
    a("s_mov_b64 exec, 1")
    a("v_mov_b32 v2, 0x%x\nv_mov_b32 v3, 1" % (LCNT + 4 * word))
    a("ds_add_rtn_u32 v4, v2, v3")
    a("s_waitcnt lgkmcnt(0)")
    a("v_readfirstlane_b32 s4, v4")
    a("s_mov_b64 exec, -1")
    a("s_cmp_eq_u32 s4, 3\ns_cbranch_scc0 %s" % lab)
    signal(a, idx_code)
    a.label(lab)

def only_w0(a, body):
    lab = a.new("w0")
    a("s_cmp_lg_u32 %s, 0\ns_cbranch_scc1 %s" % (s(S_PW), lab))
    body()
    a.label(lab)

def lanes_all(off_code, target):
    return off_code + "\nv_mov_b32 v3, %d" % target

def small_token_offsets(a, dst, rs_shift, lanefn):
    a("s_lshl_b32 s4, %s, 6\ns_lshl_b32 s5, %s, 5\ns_add_u32 s4, s4, s5" % (s(S_RT), s(S_WM)))
    a("v_and_b32 %s, 15, v0" % v(dst))
    a("v_add_u32 %s, s4, %s" % (v(dst), v(dst)))
    lanefn(dst + 1)
    a("v_lshl_add_u32 %s, %s, %d, %s" % (v(dst), v(dst), rs_shift, v(dst + 1)))
    a("v_add_u32 %s, %d, %s" % (v(dst + 1), 16 << rs_shift, v(dst)))

def small_mfmas(B):
    def f(set_, first):
        out = []
        for k2 in range(2):
            for tb in range(2):
                for ff in range(2):
                    out.append(mm(B.A(tb, ff), B.wf[set_] + k2 * 8 + ff * 4, B.xf[set_] + k2 * 8 + tb * 4, first and k2 == 0))
        return out
    return f

def only_wave0(a, body):
    lab = a.new("c0")
    a("s_cmp_lg_u32 s3, 0\ns_cbranch_scc1 %s" % lab)
    body()
    a.label(lab)
def poll_h(a):
    a("s_lshr_b32 s6, %s, 1" % s(S_RT))
    a("s_add_u32 s5, s6, 1\ns_min_u32 s5, s5, 15")
    a("s_sub_u32 s7, s6, 1\ns_max_i32 s7, s7, 0")
    a("s_bitcmp1_b32 %s, 0\ns_cselect_b32 s5, s5, s7" % s(S_RT))
    a("s_lshl_b32 %s, s6, 8\ns_lshl_b32 %s, s5, 8" % (s(S_SY + 1), s(S_SY + 2)))
    poll(a, "v_mov_b32 v2, %s\nv_mov_b32 v3, %s\nv_cmp_eq_u32 vcc, 1, v0\ns_nop 1\nv_cndmask_b32 v2, v2, v3, vcc\nv_add_u32 v2, %d, v2\nv_mov_b32 v3, 16" % (s(S_SY + 1), s(S_SY + 2), CNT_H * 256))
def poll3(a):
    a("s_add_u32 s5, %s, %d\ns_lshl_b32 %s, s5, 8" % (s(S_RT), CNT_X1, s(S_SY + 1)))
    poll(a, "v_mov_b32 v2, %s\nv_mov_b32 v3, 16" % s(S_SY + 1))
def poll4a(a):
    a("s_lshr_b32 s5, %s, 3\ns_add_u32 s5, s5, %d\ns_lshl_b32 %s, s5, 8" % (s(S_RT), CNT_O, s(S_SY + 1)))
    poll(a, "v_mov_b32 v2, %s\nv_mov_b32 v3, 16" % s(S_SY + 1))
def poll4b(a):
    a("s_lshr_b32 s5, %s, 1\ns_add_u32 s5, s5, %d\ns_lshl_b32 %s, s5, 8" % (s(S_RT), CNT_G, s(S_SY + 1)))
    poll(a, "v_mov_b32 v2, %s\nv_mov_b32 v3, 11" % s(S_SY + 1))

def c_p1(a):
    R = Regs(8)
    B = Big(R, True, True)
    vtok = R.alloc(4)
    X = R.alloc(24, 4)
    SW = R.alloc(4); SR = R.alloc(1); RD = R.alloc(16, 4)
    VP = R.alloc(2); VD = R.alloc(1)
    T = B.xf[0]
    B.setup(a, 2)
    inj1 = None
    if OPT.l2pf:
        pf_addr(a, VP)
        lst = pf_list(VP, VD, [(P_W2, D * D * 2, False), (P_WO, D * D * 2, True), (P_W3, D * F * 2, False)])
        inj1 = {OPT.pfstep + i: [x] for i, x in enumerate(lst)}
    lab = a.new("lz")
    a("s_cmp_lg_u32 s3, 0\ns_cbranch_scc1 %s" % lab)
    a("v_lshlrev_b32 v2, 2, v0\nv_add_u32 v2, 0x%x, v2\nv_mov_b32 v3, 0" % LCNT)
    set_exec(a, 0xffff)
    a("ds_write_b32 v2, v3")
    full_exec(a)
    a.label(lab)
    a("s_waitcnt lgkmcnt(0)")
    lab = a.new("gz")
    a("s_or_b32 s4, s2, s3\ns_cmp_lg_u32 s4, 0\ns_cbranch_scc1 %s" % lab)
    cnt_srd(a)
    a("v_lshlrev_b32 v2, 8, v0\nv_mov_b32 v3, 0")
    a("buffer_store_dword v3, v2, %s, 0 offen sc1" % s(SRD_D, 4))
    srd(a, SRD_C, P_DBG, 0, 256)
    a("s_waitcnt vmcnt(0)")
    a("v_mov_b32 v2, 0\nv_mov_b32 v3, 1")
    a("s_mov_b64 exec, 1")
    a("buffer_store_dword v3, v2, %s, 0 offen sc1" % s(SRD_C, 4))
    a("s_mov_b64 exec, -1")
    a.label(lab)
    srd(a, SRD_A, P_WS, WS_PQ, SZ_ACT)
    srd(a, SRD_B, P_WS, WS_KVP, 16 * 32 * KVP_ST)
    srd(a, SRD_C, P_WS, WS_XST, S * 8)
    srd(a, SRD_D, P_WS, WS_H, SZ_PAD)
    a("s_cmp_ge_u32 %s, 4\ns_cbranch_scc0 c1_sw" % s(S_CT))
    a("s_cmp_ge_u32 %s, 12\ns_cbranch_scc1 c1_sw" % s(S_CT))
    mainloop(a, 8, B.reads, lambda st, first: B.mfmas(st, first, False), 2, inject=inj1)
    mfma_drain(a)
    stats_from_gram(a, B, T, False)
    colsum_to_table(a, B, T + 12)
    a("s_waitcnt lgkmcnt(0)\ns_barrier")
    kv_epilogue(a, B, T, X)
    a("s_branch c1_done")
    a.label("c1_sw")
    mainloop(a, 8, B.reads, lambda st, first: B.mfmas(st, first, True), 2, inject=inj1)
    mfma_drain(a)
    stats_from_gram(a, B, T, True)
    colsum_to_table(a, B, T + 12)
    a("s_cmp_ge_u32 %s, 12\ns_cbranch_scc1 c1_h" % s(S_CT))
    big_token_offsets(a, vtok, rs_shift=5, lanefn=lane_pair(65536)(a))
    a("s_lshl_b32 s4, %s, 3\ns_lshl_b32 s5, %s, 2\ns_add_u32 s4, s4, s5\ns_lshl_b32 %s, s4, 16" % (s(S_CT), s(S_WN), s(sB)))
    pair_soffsets(a, sP, sB, 16)
    a("s_waitcnt lgkmcnt(0)\ns_barrier")
    q_epilogue(a, B, T, SRD_A, vtok, sP)
    a("s_branch c1_done")
    a.label("c1_h")
    a("s_mov_b32 %s, %d" % (s(sL), LDA))
    Stager.setup(a, SW, SR, vtok, rs_sgpr=sL)
    a("s_sub_u32 s4, %s, 12\ns_lshl_b32 s4, s4, 8\ns_lshl_b32 s5, %s, 7\ns_add_u32 %s, s4, s5\ns_add_u32 %s, %s, %d" % (s(S_CT), s(S_WN), s(sP), s(sP + 1), s(sP), 8 * LDA))
    a("s_waitcnt lgkmcnt(0)\ns_barrier")
    gelu_epilogue(a, B, T, True, Stager(a, SW, SR, vtok, SRD_D, sP, sP + 1, RD))
    a.label("c1_done")
    stamp(a, 5)
    consumer_done(a, 0, "s_add_u32 s4, %s, %d" % (s(S_RT), CNT_H))
    stamp(a, 6)
    return R.hi

def c_p2(a):
    tile_ids_small(a, 4)
    R = Regs(8)
    B = Small(R)
    vtok = R.alloc(2); vtk8 = R.alloc(2)
    XR = R.alloc(4, 4)
    L = R.alloc(12, 4)
    small_token_offsets(a, vtok, 10, lane_pair(32)(a))
    sF = S_EP
    a("s_lshl_b32 s4, %s, 7\ns_lshl_b32 s5, %s, 6\ns_add_u32 %s, s4, s5" % (s(S_CT), s(S_WN), s(sF)))
    a("s_lshl_b32 s4, %s, 6\ns_lshl_b32 s5, %s, 5\ns_add_u32 s4, s4, s5" % (s(S_RT), s(S_WM)))
    a("v_and_b32 %s, 15, v0" % v(vtk8))
    a("v_add_u32 %s, s4, %s" % (v(vtk8), v(vtk8)))
    a("v_lshlrev_b32 %s, 3, %s" % (v(vtk8), v(vtk8)))
    B.setup(a, 2)
    only_wave0(a, lambda: poll_h(a))
    srd(a, SRD_A, P_X, 0, SZ_ACT)
    srd(a, SRD_B, P_WS, WS_XST, S * 8)
    srd(a, SRD_C, P_WS, WS_X1, SZ_PAD)
    a("s_barrier")
    stamp(a, 7)
    for tb in range(2):
        a("buffer_load_dwordx4 %s, %s, %s, %s offen" % (v(L + 4 * tb, 4), v(vtok + tb), s(SRD_A, 4), s(sF)))
        a("buffer_load_dwordx2 %s, %s, %s, 0 offen offset:%d sc1" % (v(L + 8 + 2 * tb, 2), v(vtk8), s(SRD_B, 4), tb * 128))
    mainloop(a, 4, B.reads, small_mfmas(B), 8)
    srd(a, SRD_D, P_WS, WS_X1ST, 32 * 8 * 512)
    a("s_waitcnt vmcnt(0)")
    for tb in range(2): swap_pair(a, L + 4 * tb)
    mfma_drain(a)
    T = B.xf[0]
    for tb in range(2):
        pm = L + 8 + 2 * tb
        a("v_mul_f32 %s, %s, %s" % (v(pm), v(pm), v(pm + 1)))
        a("v_sub_f32 %s, 0, %s" % (v(pm), v(pm)))
        for f in range(2):
            A = B.A(tb, f); src = L + 4 * tb + 2 * f
            unpack_bf16(a, XR, XR + 1, src); unpack_bf16(a, XR + 2, XR + 3, src + 1)
            for i in range(2):
                a("v_pk_fma_f32 %s, %s, %s, %s op_sel:[0,1,0] op_sel_hi:[1,1,0]" % (v(XR + 2 * i, 2), v(XR + 2 * i, 2), v(pm, 2), v(pm, 2)))
            for i in range(2):
                a("v_pk_add_f32 %s, %s, %s" % (v(A + 2 * i, 2), v(A + 2 * i, 2), v(XR + 2 * i, 2)))
    vw, vs = T + 20, T + 21
    a("s_lshl_b32 s5, %s, 2" % s(S_WN))
    a("v_lshrrev_b32 %s, 5, v0\nv_add_u32 %s, s5, %s" % (v(vw), v(vw), v(vw)))
    a("v_and_b32 %s, 7, v0\nv_xor_b32 %s, %s, %s\nv_lshlrev_b32 %s, 4, %s" % (v(vs), v(vw), v(vw), v(vs), v(vw), v(vw)))
    a("v_and_b32 %s, 15, v0\nv_lshl_add_u32 %s, %s, 7, %s" % (v(vs), v(vw), v(vs), v(vw)))
    a("v_bfe_u32 %s, v0, 4, 1\nv_lshl_add_u32 %s, %s, 3, %s" % (v(vs), v(vw), v(vs), v(vw)))
    a("s_lshl_b32 s4, %s, 12\ns_add_u32 s4, s4, 0x%x" % (s(S_WM), STG))
    a("v_add_u32 %s, s4, %s" % (v(vw), v(vw)))
    a("v_xor_b32 %s, 32, %s" % (v(vw + 2), v(vw)))
    for tb in range(2):
        o = T + 4 * tb
        for f in range(2):
            A = B.A(tb, f)
            a("v_cvt_pk_bf16_f32 %s, %s, %s" % (v(o + 2 * f), v(A), v(A + 1)))
            a("v_cvt_pk_bf16_f32 %s, %s, %s" % (v(o + 2 * f + 1), v(A + 2), v(A + 3)))
            a("ds_write_b64 %s, %s offset:%d" % (v(vw + 2 * f), v(o + 2 * f, 2), tb * 2048))
    for tb in range(2):
        st = T + 8 + 2 * tb
        p, q_ = T + 12, T + 14
        A0, A1 = B.A(tb, 0), B.A(tb, 1)
        a("v_pk_add_f32 %s, %s, %s" % (v(p, 2), v(A0, 2), v(A0 + 2, 2)))
        a("v_pk_mul_f32 %s, %s, %s" % (v(q_, 2), v(A0, 2), v(A0, 2)))
        a("v_pk_add_f32 %s, %s, %s" % (v(p, 2), v(p, 2), v(A1, 2)))
        a("v_pk_fma_f32 %s, %s, %s, %s" % (v(q_, 2), v(A0 + 2, 2), v(A0 + 2, 2), v(q_, 2)))
        a("v_pk_add_f32 %s, %s, %s" % (v(p, 2), v(p, 2), v(A1 + 2, 2)))
        a("v_pk_fma_f32 %s, %s, %s, %s" % (v(q_, 2), v(A1, 2), v(A1, 2), v(q_, 2)))
        a("v_pk_fma_f32 %s, %s, %s, %s" % (v(q_, 2), v(A1 + 2, 2), v(A1 + 2, 2), v(q_, 2)))
        a("v_add_f32 %s, %s, %s" % (v(st), v(p), v(p + 1)))
        a("v_add_f32 %s, %s, %s" % (v(st + 1), v(q_), v(q_ + 1)))
        xlane_sum_q(a, st, T + 16); xlane_sum_q(a, st + 1, T + 17)
    a("s_lshl_b32 s4, %s, 9\ns_lshl_b32 s5, %s, 3\ns_add_u32 s4, s4, s5\ns_add_u32 s4, s4, 0x%x" % (s(S_WM), s(S_WN), STG + 8192))
    a("v_and_b32 %s, 15, v0\nv_lshl_add_u32 %s, %s, 4, s4" % (v(vs), v(vs), v(vs)))
    set_exec(a, 0xffff)
    for tb in range(2):
        a("ds_write_b64 %s, %s offset:%d" % (v(vs), v(T + 8 + 2 * tb, 2), tb * 256))
    full_exec(a)
    a("v_lshrrev_b32 %s, 3, v0\nv_and_b32 %s, 7, v0\nv_xor_b32 %s, %s, %s\nv_lshlrev_b32 %s, 4, %s" % (v(T), v(T + 1), v(T + 2), v(T), v(T + 1), v(T + 2), v(T + 2)))
    a("v_lshl_add_u32 %s, %s, 7, %s" % (v(T + 2), v(T), v(T + 2)))
    a("s_lshl_b32 s4, s3, 11\ns_add_u32 s4, s4, 0x%x" % STG)
    a("v_add_u32 %s, s4, %s" % (v(T + 2), v(T + 2)))
    a("s_lshl_b32 s4, %s, 6\ns_lshl_b32 s5, s3, 4\ns_add_u32 s4, s4, s5" % s(S_RT))
    a("s_mov_b32 s5, %d" % LDA)
    a("v_add_u32 %s, s4, %s\nv_mul_u32_u24 %s, s5, %s\nv_lshl_add_u32 %s, %s, 4, %s" % (v(T), v(T), v(T), v(T), v(T), v(T + 1), v(T)))
    a("s_lshl_b32 %s, %s, 7\ns_add_u32 %s, %s, %d" % (s(sF), s(S_CT), s(sF + 1), s(sF), 8 * LDA))
    a("v_lshlrev_b32 %s, 4, v0\nv_add_u32 %s, 0x%x, %s" % (v(T + 3), v(T + 3), STG + 8192, v(T + 3)))
    a("s_waitcnt lgkmcnt(0)")
    a("s_barrier")
    for i in range(2):
        a("ds_read_b128 %s, %s offset:%d" % (v(T + 4 + 4 * i, 4), v(T + 2), i * 1024))
    a("ds_read_b128 %s, %s" % (v(T + 12, 4), v(T + 3)))
    a("s_lshl_b32 s4, %s, 3\ns_add_u32 s4, s4, %s\ns_lshl_b32 s4, s4, 9" % (s(S_RT), s(S_CT)))
    a("v_lshlrev_b32 %s, 3, v0" % v(T + 3))
    a("s_waitcnt lgkmcnt(0)")
    for i in range(2):
        a("buffer_store_dwordx4 %s, %s, %s, %s offen sc1" % (v(T + 4 + 4 * i, 4), v(T), s(SRD_C, 4), s(sF + i)))
    lab = a.new("nst")
    a("s_cmp_lg_u32 s3, 0\ns_cbranch_scc1 %s" % lab)
    a("v_pk_add_f32 %s, %s, %s" % (v(T + 12, 2), v(T + 12, 2), v(T + 14, 2)))
    a("buffer_store_dwordx2 %s, %s, %s, s4 offen sc1" % (v(T + 12, 2), v(T + 3), s(SRD_D, 4)))
    a.label(lab)
    stamp(a, 11)
    consumer_done(a, 1, "s_lshr_b32 s4, %s, 1\ns_add_u32 s4, s4, %d" % (s(S_RT), CNT_X1))
    stamp(a, 12)
    return R.hi

def o_job(a):
    R = Regs(8)
    KV = R.alloc(32, 4); Z = R.alloc(16, 4); PQ = R.alloc(32, 4); OP = R.alloc(8, 4); N = R.alloc(16, 4); Dn = R.alloc(16, 4)
    vkv = R.alloc(1); vz = R.alloc(1); vpq = R.alloc(1); vl = R.alloc(1)
    poll(a, "v_and_b32 v2, 15, v0\nv_lshlrev_b32 v2, 8, v2\nv_mov_b32 v3, 16")
    srd(a, SRD_A, P_WS, WS_KVP, 16 * 32 * KVP_ST)
    srd(a, SRD_B, P_WS, WS_PQ, SZ_ACT)
    srd(a, SRD_C, P_WS, WS_O, SZ_ACT)
    a("s_and_b32 s6, %s, 3\ns_lshl_b32 s6, s6, 2\ns_add_u32 s6, s6, %s\ns_sub_u32 s6, s6, 11\ns_lshl_b32 s6, s6, 1" % (s(S_RT), s(S_CT)))
    a("s_lshl_b32 s7, s3, 7\ns_add_u32 s7, s7, s6\ns_mul_i32 %s, s7, %d" % (s(S_SY + 1), KVP_ST))
    a("v_and_b32 v2, 15, v0\nv_lshrrev_b32 v3, 4, v0")
    a("v_lshlrev_b32 %s, 6, v2" % v(vkv))
    a("v_lshl_add_u32 %s, v3, 4, %s" % (v(vkv), v(vkv)))
    a("v_bfe_u32 v4, v0, 2, 2\nv_mul_u32_u24 v4, %d, v4\nv_and_b32 v5, 3, v0\nv_lshl_add_u32 v4, v5, 4, v4\nv_and_b32 v5, 1, v3\nv_mul_u32_u24 v5, %d, v5\nv_add3_u32 %s, v4, v5, 0\nv_add_u32 %s, 1024, %s" % (32 * KVP_ST, KVP_ST, v(vz), v(vz), v(vz)))
    a("s_lshr_b32 s4, %s, 2\ns_lshl_b32 s4, s4, 9\ns_lshl_b32 s5, s3, 7\ns_add_u32 s4, s4, s5" % s(S_RT))
    a("v_add_u32 v2, s4, v2\nv_and_b32 v4, 1, v3\nv_lshl_add_u32 v2, v4, 4, v2\nv_lshlrev_b32 v2, 5, v2\nv_lshrrev_b32 v4, 1, v3\nv_lshl_add_u32 v2, v4, 4, v2")
    a("s_lshl_b32 s6, s6, 16")
    a("v_add_u32 %s, s6, v2" % v(vpq))
    for hd in range(2):
        for p in range(4):
            a("s_add_u32 s4, %s, %d" % (s(S_SY + 1), p * 32 * KVP_ST + hd * KVP_ST))
            a("buffer_load_dwordx4 %s, %s, %s, s4 offen sc1" % (v(KV + 16 * hd + 4 * p, 4), v(vkv), s(SRD_A, 4)))
    a("buffer_load_dwordx4 %s, %s, %s, %s offen sc1" % (v(Z, 4), v(vz), s(SRD_A, 4), s(S_SY + 1)))
    for hd in range(2):
        a("s_mov_b32 s4, %d" % (hd * 65536))
        for pr in range(4):
            a("buffer_load_dwordx4 %s, %s, %s, s4 offen offset:%d sc1" % (v(PQ + 16 * hd + 4 * pr, 4), v(vpq), s(SRD_B, 4), pr * 1024))
    a("s_waitcnt vmcnt(8)")
    for hd in range(2):
        for (x, y) in ((0, 2), (1, 3), (0, 1)):
            for i in range(2):
                a("v_pk_add_f32 %s, %s, %s" % (v(KV + 16 * hd + 4 * x + 2 * i, 2), v(KV + 16 * hd + 4 * x + 2 * i, 2), v(KV + 16 * hd + 4 * y + 2 * i, 2)))
    for rot in (8, 4):
        for i in range(4):
            a("v_add_f32_dpp %s, %s, %s row_ror:%d row_mask:0xf bank_mask:0xf" % (v(Z + i), v(Z + i), v(Z + i), rot))
        a("s_nop 1")
    a("s_lshl_b32 s4, s3, 12\ns_add_u32 s4, s4, 0x%x" % STG)
    a("v_lshl_add_u32 %s, v0, 4, s4" % v(vl))
    a("ds_write_b128 %s, %s" % (v(vl), v(KV, 4)))
    a("ds_write_b128 %s, %s offset:1024" % (v(vl), v(KV + 16, 4)))
    a("v_and_b32 v2, 3, v0\nv_lshlrev_b32 v2, 4, v2\nv_bfe_u32 v3, v0, 4, 1\nv_lshl_add_u32 v2, v3, 6, v2\nv_add_u32 v2, s4, v2")
    set_exec(a, 0x000f000f)
    a("ds_write_b128 v2, %s offset:2048" % v(Z, 4))
    a("s_waitcnt lgkmcnt(0)")
    a("s_mov_b64 exec, 1")
    a("v_mov_b32 v2, 0x%x\nv_mov_b32 v3, 1" % (LCNT + 4 * 4))
    a("ds_add_u32 v2, v3")
    l1, l2 = a.new("osp"), a.new("ospd")
    a("s_mov_b32 %s, 0" % s(S_SY))
    a.label(l1)
    a("ds_read_b32 v4, v2\ns_waitcnt lgkmcnt(0)\nv_readfirstlane_b32 s4, v4")
    a("s_add_u32 %s, %s, 1\ns_cmp_ge_u32 %s, %d\ns_cbranch_scc1 %s" % (s(S_SY), s(S_SY), s(S_SY), SPIN_MAX * 8, l2))
    a("s_cmp_lt_u32 s4, 4\ns_cbranch_scc1 %s" % l1)
    a.label(l2)
    a("s_mov_b64 exec, -1")
    a("v_lshlrev_b32 %s, 4, v0\nv_add_u32 %s, 0x%x, %s" % (v(vl), v(vl), STG, v(vl)))
    a("v_lshrrev_b32 v2, 4, v0\nv_lshlrev_b32 v2, 4, v2\nv_add_u32 v2, 0x%x, v2" % (STG + 2048))
    a("s_waitcnt vmcnt(0)")
    for i in range(8): swap_pair(a, PQ + 4 * i)
    for hd in range(2):
        for p in range(4):
            a("ds_read_b128 %s, %s offset:%d" % (v(KV + 4 * p, 4), v(vl), p * 4096 + hd * 1024))
            a("ds_read_b128 %s, v2 offset:%d" % (v(Z + 4 * p, 4), p * 4096 + hd * 64))
        a("s_waitcnt lgkmcnt(0)")
        for base in (KV, Z):
            for (x, y) in ((0, 2), (1, 3), (0, 1)):
                for i in range(2):
                    a("v_pk_add_f32 %s, %s, %s" % (v(base + 4 * x + 2 * i, 2), v(base + 4 * x + 2 * i, 2), v(base + 4 * y + 2 * i, 2)))
        opk, opz = OP + 4 * hd, OP + 4 * hd + 2
        a("v_cvt_pk_bf16_f32 %s, %s, %s" % (v(opk), v(KV), v(KV + 1)))
        a("v_cvt_pk_bf16_f32 %s, %s, %s" % (v(opk + 1), v(KV + 2), v(KV + 3)))
        a("v_cvt_pk_bf16_f32 %s, %s, %s" % (v(opz), v(Z), v(Z + 1)))
        a("v_cvt_pk_bf16_f32 %s, %s, %s" % (v(opz + 1), v(Z + 2), v(Z + 3)))
    for hd in range(2):
        opk, opz = OP + 4 * hd, OP + 4 * hd + 2
        for half in range(2):
            pq = PQ + 16 * hd + 8 * half
            a("s_nop 1")
            for tb in range(4):
                a("v_mfma_f32_16x16x16_bf16 %s, %s, %s, 0" % (v(N + 4 * tb, 4), v(opk, 2), v(pq + 2 * tb, 2)))
                a("v_mfma_f32_16x16x16_bf16 %s, %s, %s, 0" % (v(Dn + 4 * tb, 4), v(opz, 2), v(pq + 2 * tb, 2)))
            mfma_drain(a)
            for tb in range(4):
                a("v_add_f32 %s, %s, %s" % (v(Dn + 4 * tb), fh(1e-6), v(Dn + 4 * tb)))
            for tb in range(4):
                a("v_rcp_f32 %s, %s" % (v(Dn + 4 * tb), v(Dn + 4 * tb)))
            a("s_nop 0")
            for tb in range(4):
                for i in range(2):
                    a("v_pk_mul_f32 %s, %s, %s op_sel_hi:[1,0]" % (v(N + 4 * tb + 2 * i, 2), v(N + 4 * tb + 2 * i, 2), v(Dn + 4 * tb, 2)))
            for tb in range(4):
                a("v_cvt_pk_bf16_f32 %s, %s, %s" % (v(pq + 2 * tb), v(N + 4 * tb), v(N + 4 * tb + 1)))
                a("v_cvt_pk_bf16_f32 %s, %s, %s" % (v(pq + 2 * tb + 1), v(N + 4 * tb + 2), v(N + 4 * tb + 3)))
            a("s_nop 1")
            a("s_mov_b32 s4, %d" % (hd * 65536))
            for pr in range(2):
                swap_pair(a, pq + 4 * pr)
                a("buffer_store_dwordx4 %s, %s, %s, s4 offen offset:%d sc1" % (v(pq + 4 * pr, 4), v(vpq), s(SRD_C, 4), (2 * half + pr) * 1024))
    consumer_done(a, 3, "s_lshr_b32 s4, %s, 2\ns_add_u32 s4, s4, %d" % (s(S_RT), CNT_O))
    stamp(a, 24)
    return R.hi

def c_p3(a):
    tile_ids_big(a, "2x16", False)
    a("s_cmp_eq_u32 %s, 15\ns_cbranch_scc1 c4_start" % s(S_CT))
    a("s_cmp_lt_u32 %s, 11\ns_cbranch_scc1 c3_g" % s(S_CT))
    hio = o_job(a)
    a("s_branch c4_start")
    a.label("c3_g")
    R = Regs(8)
    B = Big(R, False, True)
    vtok = R.alloc(4)
    X = R.alloc(32, 4)
    VR = R.alloc(1)
    SW = R.alloc(4); SR = R.alloc(1)
    VP = R.alloc(2); VD = R.alloc(1)
    RD = X + 16
    T = B.xf[0]
    B.setup(a, 2)
    inj3 = None
    if OPT.l2pf:
        pf_addr(a, VP)
        lst = pf_list(VP, VD, [(P_W4, F * D * 2, False)])
        inj3 = {2 + i: [x] for i, x in enumerate(lst)}
    a("s_lshl_b32 s4, %s, 1\ns_add_u32 s4, s4, %s\ns_lshl_b32 s4, s4, 12\ns_lshl_b32 s5, %s, 8\ns_add_u32 s4, s4, s5" % (s(S_RT), s(S_WM), s(S_WN)))
    a("v_and_b32 %s, 31, v0\nv_lshlrev_b32 %s, 3, %s\nv_lshrrev_b32 v3, 5, v0\nv_lshl_add_u32 %s, v3, 11, %s\nv_add_u32 %s, s4, %s" % ((v(VR),) * 7))
    a("s_mov_b32 %s, %d" % (s(sL), LDG))
    Stager.setup(a, SW, SR, vtok, rs_sgpr=sL)
    a("s_lshl_b32 s4, %s, 8\ns_lshl_b32 s5, %s, 7\ns_add_u32 %s, s4, s5\ns_add_u32 %s, %s, %d" % (s(S_CT), s(S_WN), s(sP), s(sP + 1), s(sP), 8 * LDG))
    only_wave0(a, lambda: poll3(a))
    srd(a, SRD_A, P_WS, WS_X1ST, 32 * 8 * 512)
    srd(a, SRD_D, P_WS, WS_G, S * LDG)
    a("s_barrier")
    stamp(a, 13)
    for p in range(4):
        a("buffer_load_dwordx2 %s, %s, %s, 0 offen offset:%d sc1" % (v(X + 2 * p, 2), v(VR), s(SRD_A, 4), p * 512))
    mainloop(a, 8, B.reads, lambda st, first: B.mfmas(st, first, True), 14, inject=inj3)
    a("s_waitcnt vmcnt(0)")
    for (x, y) in ((0, 2), (1, 3), (0, 1)):
        a("v_pk_add_f32 %s, %s, %s" % (v(X + 2 * x, 2), v(X + 2 * x, 2), v(X + 2 * y, 2)))
    for i in range(2): a("v_mov_b32 %s, %s" % (v(X + 4 + i), v(X + i)))
    a("s_nop 1")
    for i in range(2): a("v_permlane32_swap_b32 %s, %s" % (v(X + 4 + i), v(X + i)))
    a("s_nop 1")
    a("v_pk_add_f32 %s, %s, %s" % (v(X, 2), v(X, 2), v(X + 4, 2)))
    a("v_mul_f32 %s, %s, %s" % (v(X), fh(1.0 / D), v(X)))
    a("v_mul_f32 %s, %s, %s" % (v(X + 1), fh(1.0 / D), v(X + 1)))
    a("v_fma_f32 %s, -%s, %s, %s" % (v(X + 1), v(X), v(X), v(X + 1)))
    a("v_add_f32 %s, %s, %s" % (v(X + 1), fh(EPS), v(X + 1)))
    a("v_rsq_f32 %s, %s" % (v(X + 1), v(X + 1)))
    a("s_lshl_b32 s4, %s, 8\ns_lshl_b32 s5, %s, 7\ns_add_u32 s4, s4, s5\ns_add_u32 s4, s4, 0x%x" % (s(S_WM), s(S_WN), TAB_M))
    a("v_and_b32 v2, 31, v0\nv_lshl_add_u32 v2, v2, 2, s4")
    a("ds_write_b32 v2, %s" % v(X))
    a("ds_write_b32 v2, %s offset:512" % v(X + 1))
    colsum_to_table(a, B, T + 12)
    a("s_waitcnt lgkmcnt(0)\ns_barrier")
    gelu_epilogue(a, B, T, False, Stager(a, SW, SR, vtok, SRD_D, sP, sP + 1, RD))
    stamp(a, 17)
    consumer_done(a, 2, "s_add_u32 s4, %s, %d" % (s(S_RT), CNT_G))
    stamp(a, 18)
    return max(R.hi, hio)

def c_p4(a):
    a.label("c4_start")
    tile_ids_small(a, 11)
    R = Regs(8)
    B = Small(R)
    vtok = R.alloc(2); VRD = R.alloc(2); L = R.alloc(16, 4); Xr = R.alloc(8, 4)
    small_token_offsets(a, vtok, 10, lane_pair(32)(a))
    sF = S_EP
    a("s_lshl_b32 s4, %s, 7\ns_lshl_b32 s5, %s, 6\ns_add_u32 %s, s4, s5" % (s(S_CT), s(S_WN), s(sF)))
    srd(a, SRD_C, P_OUT, 0, SZ_ACT)
    a("s_lshl_b32 s5, %s, 2" % s(S_WN))
    a("v_lshrrev_b32 v2, 5, v0\nv_add_u32 v2, s5, v2\nv_and_b32 v3, 7, v0\nv_xor_b32 v2, v2, v3\nv_lshlrev_b32 v2, 4, v2")
    a("v_and_b32 v3, 15, v0\nv_lshl_add_u32 v2, v3, 7, v2\nv_bfe_u32 v3, v0, 4, 1\nv_lshl_add_u32 v2, v3, 3, v2")
    a("s_lshl_b32 s4, %s, 12\ns_add_u32 s4, s4, 0x%x" % (s(S_WM), STG))
    a("v_add_u32 %s, s4, v2\nv_xor_b32 %s, 32, %s" % (v(VRD), v(VRD + 1), v(VRD)))
    B.setup(a, 2)
    only_wave0(a, lambda: poll4a(a))
    a("s_barrier")
    stamp(a, 19)
    mainloop(a, 15, B.reads, small_mfmas(B), 20, last_barrier=False)
    T = B.xf[0]
    for src in range(2):
        for tb in range(2):
            for f in range(2):
                a("ds_read_b64 %s, %s offset:%d" % (v(L + 8 * src + (tb * 2 + f) * 2, 2), v(VRD + f), src * 8192 + tb * 2048))
    mfma_drain(a)
    a("s_waitcnt lgkmcnt(0)")
    for tb in range(2):
        for f in range(2):
            A = B.A(tb, f); i = (tb * 2 + f) * 2
            unpack_bf16(a, Xr, Xr + 1, L + i); unpack_bf16(a, Xr + 2, Xr + 3, L + i + 1)
            unpack_bf16(a, Xr + 4, Xr + 5, L + 8 + i); unpack_bf16(a, Xr + 6, Xr + 7, L + 8 + i + 1)
            for k in range(2):
                a("v_pk_add_f32 %s, %s, %s" % (v(Xr + 2 * k, 2), v(Xr + 2 * k, 2), v(Xr + 4 + 2 * k, 2)))
            for k in range(2):
                a("v_pk_add_f32 %s, %s, %s" % (v(A + 2 * k, 2), v(A + 2 * k, 2), v(Xr + 2 * k, 2)))
    for tb in range(2):
        o = T + 4 * tb
        for f in range(2):
            A = B.A(tb, f)
            a("v_cvt_pk_bf16_f32 %s, %s, %s" % (v(o + 2 * f), v(A), v(A + 1)))
            a("v_cvt_pk_bf16_f32 %s, %s, %s" % (v(o + 2 * f + 1), v(A + 2), v(A + 3)))
    a("s_nop 1")
    for tb in range(2):
        swap_pair(a, T + 4 * tb)
        a("buffer_store_dwordx4 %s, %s, %s, %s offen" % (v(T + 4 * tb, 4), v(vtok + tb), s(SRD_C, 4), s(sF)))
    stamp(a, 23)
    if getattr(OPT, "dbgtime", False):
        lab = a.new("dbgt")
        a("s_cmp_lg_u32 s3, 0\ns_cbranch_scc1 %s" % lab)
        a("s_waitcnt vmcnt(0)\ns_memrealtime s[4:5]\ns_memtime s[6:7]\ns_waitcnt lgkmcnt(0)")
        a("s_sub_u32 s4, s4, s94\ns_sub_u32 s6, s6, s96")
        srd(a, SRD_A, P_DBG, 0, 256)
        a("s_and_b32 s5, s2, 3\ns_lshl_b32 s5, s5, 3\ns_add_u32 s5, s5, 16")
        a("v_mov_b32 v2, s5\nv_mov_b32 v4, s4\nv_mov_b32 v5, s6\ns_mov_b64 exec, 1")
        a("buffer_store_dwordx2 v[4:5], v2, %s, 0 offen" % s(SRD_A, 4))
        a.label(lab)
    if OPT.prof: a("s_waitcnt vmcnt(0)")
    endk(a)
    return R.hi

def std_x(a, nst, rot):
    def f(st):
        if rot:
            stage_index(a, st, nst)
            a("s_mul_i32 %s, %s, %s" % (s(S_XO), s(S_G), s(s_xs)))
        else:
            a("s_mul_i32 %s, %s, %d" % (s(S_XO), s(s_xs), st))
        return [VX + j for j in range(4)], s(S_XO)
    return f
def std_w(a, nst, rot):
    def f(st):
        if rot: a("s_mul_i32 %s, %s, %s" % (s(S_WO), s(S_G), s(s_ws)))
        else:   a("s_mul_i32 %s, %s, %d" % (s(S_WO), s(s_ws), st))
        return [VW + j for j in range(4)], s(S_WO)
    return f

def w4_setup(a):
    a("s_lshr_b32 s4, s2, 3\ns_lshr_b32 s4, s4, 2\ns_lshl_b32 %s, s4, 7" % s(s_colb))
    small_addr_w(a, VW, 2, 1024, s_colb)
    srd(a, SRD_W, P_W4, 0, F * D * 2)
def w4_prep(a):
    def f(st):
        for j in range(4): a("v_add_u32 %s, 0x%x, %s" % (v(VT + j), st * 131072, v(VW + j)))
        return [VT + j for j in range(4)], "0"
    return f

def p_all(a):
    P = Prod(a)
    a("s_sub_u32 %s, s3, 4" % s(S_PW))
    a("s_lshl_b32 %s, %s, 12" % (s(S_M0B), s(S_PW)))
    a("s_lshl_b32 %s, %s, 7" % (s(s_row0), s(S_RT)))
    a("s_mov_b32 %s, 1024\ns_mov_b32 %s, 32\ns_mov_b32 %s, 128" % (s(s_rs), s(s_ca), s(s_xs)))
    a("s_mov_b32 %s, 3072\ns_mov_b32 %s, 64\ns_mov_b32 %s, 32\ns_lshl_b32 %s, %s, 8" % (s(s_ldw), s(s_A), s(s_B), s(s_colb), s(S_CT)))
    l1, l2, l3 = a.new("p1k"), a.new("p1g"), a.new("p1h")
    a("s_cmp_lt_u32 %s, 4\ns_cbranch_scc1 %s" % (s(S_CT), l2))
    a("s_cmp_lt_u32 %s, 12\ns_cbranch_scc1 %s" % (s(S_CT), l1))
    a("s_mov_b32 %s, 1024\ns_sub_u32 %s, %s, 12\ns_lshl_b32 %s, %s, 8" % (s(s_ldw), s(s_colb), s(S_CT), s(s_colb), s(s_colb)))
    a("s_branch %s" % l2)
    a.label(l1)
    a("s_mov_b32 %s, 32\ns_mov_b32 %s, 1024\ns_sub_u32 %s, %s, 4\ns_lshl_b32 %s, %s, 7\ns_add_u32 %s, %s, 1024" % (s(s_A), s(s_B), s(s_colb), s(S_CT), s(s_colb), s(s_colb), s(s_colb), s(s_colb)))
    a.label(l2)
    big_addr_x(a, VX, 2, s_row0, s_rs, s_ca)
    big_addr_w(a, VW, 2, s_ldw, s_colb, s_A, s_B)
    a("s_lshl_b32 %s, %s, 6" % (s(s_ws), s(s_ldw)))
    a("s_waitcnt lgkmcnt(0)")
    srd(a, SRD_X, P_X, 0, SZ_ACT)
    srd(a, SRD_W, P_WQKV, 0, D * 3 * D * 2)
    a("s_cmp_lt_u32 %s, 12\ns_cbranch_scc1 %s" % (s(S_CT), l3))
    srd(a, SRD_W, P_W1, 0, D * D * 2)
    a.label(l3)
    stamp(a, 2)
    VFLAG = 44
    def hook1(ev, st):
        if ev == "issued" and st == 7:
            srd(a, SRD_A, P_DBG, 0, 256)
            a("v_mov_b32 v2, 0")
            a("buffer_load_dword %s, v2, %s, 0 offen sc1" % (v(VFLAG), s(SRD_A, 4)))
            P.add("flag", 1)
            if OPT.prefetch:
                srd(a, SRD_A, P_W2, 0, D * D * 2)
                srd(a, SRD_B, P_WO, 0, D * D * 2)
                srd(a, SRD_C, P_W3, 0, D * F * 2)
                srd(a, SRD_D, P_W4, 0, F * D * 2)
                a("s_lshl_b32 s4, s2, 2\ns_add_u32 s4, s4, %s\ns_lshl_b32 s4, s4, 10" % s(S_PW))
                a("v_lshl_add_u32 v16, v0, 4, s4")
                a("v_add_u32 v17, 0x%x, v16" % (1024 * 1024))
                a("v_add_u32 v18, 0x%x, v16" % ((-512 * 1024) & 0xffffffff))
                for (d, adr, r) in ((20, 16, SRD_A), (24, 18, SRD_B), (28, 16, SRD_C), (32, 17, SRD_C), (36, 16, SRD_D), (40, 17, SRD_D)):
                    a("buffer_load_dwordx4 %s, %s, %s, 0 offen" % (v(d, 4), v(adr), s(r, 4)))
                P.add("pf", 6)
    producer_phase(P, 8, std_x(a, 8, OPT.rot1), std_w(a, 8, OPT.rot1), 0, OPT.depth, 3, hook=hook1)
    a("s_barrier")
    P.wait(["flag"])
    lab = a.new("ini")
    a("v_readfirstlane_b32 s4, %s\ns_cmp_lg_u32 s4, 0\ns_cbranch_scc1 %s" % (v(VFLAG), lab))
    poll(a, "v_mov_b32 v2, 0\nv_mov_b32 v3, 1", srd_code=lambda: srd(a, SRD_D, P_DBG, 0, 256))
    a.label(lab)
    a("s_barrier")
    a("s_mov_b32 %s, %s" % (s(S_T0 + 8), s(S_CT)))
    tile_ids_small(a, 4)
    a("s_lshl_b32 %s, %s, 7" % (s(s_colb), s(S_CT)))
    small_addr_w(a, VW, 2, 1024, s_colb)
    srd(a, SRD_W, P_W2, 0, D * D * 2)
    for st in range(4):
        a("s_mov_b32 %s, %d" % (s(S_WO), st * 131072))
        P.part(st, "w", [VW + j for j in range(4)], s(S_WO), SRD_W)
    a("s_lshl_b32 %s, %s, 6" % (s(s_row0), s(S_RT)))
    small_addr_x(a, VX, 2, s_row0, LDA)
    srd(a, SRD_X, P_WS, WS_H, SZ_PAD)
    lab = a.new("nok1")
    a("s_cmp_lt_u32 %s, 4\ns_cbranch_scc1 %s\ns_cmp_ge_u32 %s, 12\ns_cbranch_scc1 %s" % (s(S_T0 + 8), lab, s(S_T0 + 8), lab))
    a("s_barrier")
    a.label(lab)
    def pf3():
        a("s_lshr_b32 s4, s2, 3\ns_lshl_b32 s4, s4, 2\ns_add_u32 s4, s4, %s\ns_sub_u32 s5, 127, s4\ns_lshl_b32 s4, s4, 13\ns_lshl_b32 s5, s5, 13" % s(S_PW))
        a("v_lshl_add_u32 v40, v0, 7, s4\nv_lshl_add_u32 v41, v0, 7, s5")
        srd(a, SRD_A, P_W3, 0, 256 * F * 2)
        srd(a, SRD_B, P_WO, 0, 256 * D * 2)
        a("buffer_load_dword v42, v40, %s, 0 offen" % s(SRD_A, 4))
        a("buffer_load_dword v43, v41, %s, 0 offen" % s(SRD_B, 4))
        P.add("pf", 2)
    if OPT.pf3 == "p1tail": pf3()
    stamp(a, 5)
    a("s_barrier")
    stamp(a, 7)
    pos = [-LDA, LDA + 256, -2 * LDA + 512, 2 * LDA + 768]
    def x2(st):
        for j in range(4): a("v_add_u32 %s, 0x%x, %s" % (v(VT + j), pos[st] & 0xffffffff, v(VX + j)))
        return [VT + j for j in range(4)], "0"
    def hook2(ev, st):
        if ev == "issued" and st == 3 and OPT.pf3 == "d2": pf3()
    producer_phase(P, 4, x2, None, 4, 4, 8, xsc=SC1, hook=hook2)
    a("s_barrier")
    a("s_barrier")
    stamp(a, 10)
    def wo_prefetch():
        a("s_lshr_b32 s4, s2, 3\ns_lshr_b32 s4, s4, 2\ns_lshl_b32 %s, s4, 7" % s(s_colb))
        small_addr_w(a, VW, 2, 1024, s_colb)
        srd(a, SRD_W, P_WO, 0, D * D * 2)
        for st in range(4):
            a("s_mov_b32 %s, %d" % (s(S_WO), st * 131072))
            P.part(st, "w", [VW + j for j in range(4)], s(S_WO), SRD_W)
    tile_ids_big(a, "2x16", False)
    lskip = a.new("p3skip")
    a("s_cmp_ge_u32 %s, 11\ns_cbranch_scc1 %s" % (s(S_CT), lskip))
    a("s_lshl_b32 %s, %s, 7" % (s(s_row0), s(S_RT)))
    a("s_mov_b32 %s, 64\ns_mov_b32 %s, 32" % (s(s_A), s(s_B)))
    a("s_mov_b32 %s, %d\ns_mov_b32 %s, 32\ns_mov_b32 %s, %d\ns_lshl_b32 %s, %s, 8\ns_mov_b32 %s, 128" % (s(s_rs), LDA, s(s_ca), s(s_ldw), F * 2, s(s_colb), s(S_CT), s(s_xs)))
    srd(a, SRD_W, P_W3, 0, D * F * 2)
    srd(a, SRD_X, P_WS, WS_X1, SZ_PAD)
    big_addr_w(a, VW, 2, s_ldw, s_colb, s_A, s_B)
    lm = a.new("p3m")
    a("s_cmp_lg_u32 %s, 10\ns_cbranch_scc1 %s" % (s(S_CT), lm))
    a("v_lshrrev_b32 v2, 4, v0\nv_bfe_u32 v3, v0, 1, 3\nv_xor_b32 v2, v2, v3\nv_xor_b32 v3, 4, v2\nv_mov_b32 v4, 0x%x" % OOB)
    a("v_cmp_le_u32 vcc, 6, v2\ns_nop 1")
    a("v_cndmask_b32 %s, %s, v4, vcc\nv_cndmask_b32 %s, %s, v4, vcc" % (v(VW), v(VW), v(VW + 1), v(VW + 1)))
    a("v_cmp_le_u32 vcc, 6, v3\ns_nop 1")
    a("v_cndmask_b32 %s, %s, v4, vcc\nv_cndmask_b32 %s, %s, v4, vcc" % (v(VW + 2), v(VW + 2), v(VW + 3), v(VW + 3)))
    a.label(lm)
    a("s_lshl_b32 %s, %s, 6" % (s(s_ws), s(s_ldw)))
    for st in range(4):
        r, o = std_w(a, 8, False)(st)
        P.part(st, "w", r, o, SRD_W)
    big_addr_x(a, VX, 2, s_row0, s_rs, s_ca)
    a("s_barrier")
    stamp(a, 13)
    producer_phase(P, 8, std_x(a, 8, False), std_w(a, 8, False), 4, 4, 14, xsc=SC1)
    a("s_barrier")
    a("s_barrier")
    a.label(lskip)
    P.ops = []
    wo_prefetch()
    tile_ids_small(a, 11)
    a("s_lshl_b32 %s, %s, 6" % (s(s_row0), s(S_RT)))
    VX2, VRS = 20, 24
    small_addr_x2(a, VX, 2, s_row0, 32, 65536)
    small_addr_x(a, VX2, 2, s_row0, LDG)
    srd(a, SRD_X, P_WS, WS_O, SZ_ACT)
    srd(a, SRD_A, P_WS, WS_G, S * LDG)
    srd(a, SRD_B, P_W4, 0, F * D * 2)
    a("v_lshrrev_b32 v2, 3, v0\nv_and_b32 v3, 7, v0\nv_xor_b32 v3, v3, v2\nv_lshlrev_b32 v3, 4, v3")
    a("s_lshl_b32 s4, %s, 4\ns_add_u32 s4, s4, %s\nv_add_u32 v2, s4, v2" % (s(S_PW), s(s_row0)))
    a("s_lshl_b32 s5, %s, 7\nv_add_u32 v3, s5, v3" % s(S_CT))
    a("v_lshl_add_u32 %s, v2, 10, v3\nv_add_u32 %s, 8192, %s" % (v(VRS), v(VRS + 1), v(VRS)))
    a("s_mov_b32 s5, %d\nv_mad_u32_u24 %s, v2, s5, v3\nv_add_u32 %s, %d, %s" % (LDA, v(VRS + 2), v(VRS + 3), 8 * LDA, v(VRS + 2)))
    stamp(a, 18)
    a("s_barrier")
    stamp(a, 19)
    def xpart(st):
        if st < 4:
            a("s_mov_b32 %s, %d" % (s(S_XO), st * 8 * 65536))
            P.part(st, "x", [VX + j for j in range(4)], s(S_XO), SRD_X, SC1)
        else:
            a("s_mov_b32 %s, %d" % (s(S_XO), (st - 4) * 256))
            P.part(st, "x", [VX2 + j for j in range(4)], s(S_XO), SRD_A, SC1)
    def wpart(st):
        for j in range(4): a("v_add_u32 %s, 0x%x, %s" % (v(VT + j), (st - 4) * 131072, v(VW + j)))
        P.part(st, "w", [VT + j for j in range(4)], "0", SRD_B)
    for st in range(4): xpart(st)
    NS4 = 15
    for st in range(NS4):
        P.wait([("x", st), ("w", st)])
        a("s_barrier")
        if st == 0: stamp(a, 20)
        if st == NS4 - 1: stamp(a, 21)
        if 1 <= st <= 3:
            wpart(st + 3)
        if st == 3:
            poll4b(a)
            stamp(a, 22)
            P.ops = []
            for k in (4, 5, 6): xpart(k)
            srd(a, SRD_C, P_X, 0, SZ_ACT)
            srd(a, SRD_D, P_WS, WS_X1, SZ_PAD)
            for src, sr, sc in ((0, SRD_C, ""), (1, SRD_D, SC1)):
                for i in range(2):
                    a("s_lshl_b32 s4, %s, 11\ns_add_u32 m0, s4, 0x%x" % (s(S_PW), STG + src * 8192 + i * 1024))
                    a("s_nop 0")
                    a("buffer_load_dwordx4 %s, %s, 0 offen%s lds" % (v(VRS + 2 * src + i), s(sr, 4), sc))
            P.add("res", 4)
        if st >= 4 and st + 3 < NS4:
            xpart(st + 3); wpart(st + 3)
    endk(a)

def generate():
    a = Asm()
    head = ["; x + linear-attention block + mixer/shift MLP for gfx950: one persistent launch, four GEMM phases.",
            "; Generated by my own generator script.",
            "; @launch grid=(256,1,1) block=(512,1,1) lds=%d" % LDS_ALL,
            '.amdgcn_target "amdgcn-amd-amdhsa--gfx950"\n.text']
    kernel_head(a, KNAME, 256)
    a("s_load_dwordx16 s[36:51], s[0:1], 0")
    a("s_load_dwordx4 s[52:55], s[0:1], 64")
    a("s_load_dwordx2 s[56:57], s[0:1], 80")
    wave_id(a)
    if OPT.prof: a("v_mov_b32 %s, 0" % v(V_ST))
    stamp(a, 0, True); stamp(a, 1)
    if getattr(OPT, "dbgtime", False):
        a("s_memrealtime s[94:95]\ns_memtime s[96:97]")
    tile_ids_big(a, "4x8", OPT.rot1)
    a("s_cmp_ge_u32 s3, 4\ns_cbranch_scc1 prod")
    wave_mn(a)
    hi = [c_p1(a), c_p2(a), c_p3(a), c_p4(a)]
    a.label("prod")
    p_all(a)
    kernel_tail(a, KNAME)
    nv = 256 if OPT.prof else (max(hi + [120]) + 7) // 8 * 8
    return "\n".join(head) + "\n" + a.text() + '.section .rodata,"a"\n' + descriptor(KNAME, nv)

if __name__ == "__main__":
    import argparse
    ap = argparse.ArgumentParser()
    ap.add_argument("out"); ap.add_argument("--prof", action="store_true")
    ap.add_argument("--nopf", action="store_true"); ap.add_argument("--norot1", action="store_true")
    ap.add_argument("--depth", type=int, default=2)
    ap.add_argument("--dbgtime", action="store_true"); ap.add_argument("--nol2pf", action="store_true"); ap.add_argument("--pfstep", type=int, default=5); ap.add_argument("--pf3", default="none"); ap.add_argument("--l2pf", action="store_true")
    x = ap.parse_args()
    OPT.dbgtime = x.dbgtime; OPT.l2pf = x.l2pf; OPT.pfstep = x.pfstep; OPT.pf3 = x.pf3
    OPT.prof = x.prof; OPT.rot = False; OPT.rot1 = not x.norot1; OPT.prefetch = not x.nopf; OPT.depth = x.depth
    open(x.out, "w").write(generate())
    print("wrote", x.out)
```

```python
import sys
sys.path.insert(0, "gen")
from g3_common import *
from g3_epi import *

KNAME = "parallel_sum__linear_attn_block__mixer_s_mlp__prompt_kernel"
s_row0, s_rs, s_ca, s_ldw, s_colb, s_A, s_B, s_xs, s_ws = [S_PP + i for i in range(9)]
VX, VW, VT = 8, 12, 16
sP, sB, sL = S_EP, S_EP + 2, S_EP + 3

def consumer_done(a, word, idx_code, younger=0):
    lab = a.new("cd")
    a("s_waitcnt vmcnt(%d)" % younger)
    a("s_mov_b64 exec, 1")
    a("v_mov_b32 v2, 0x%x\nv_mov_b32 v3, 1" % (LCNT + 4 * word))
    a("ds_add_rtn_u32 v4, v2, v3")
    a("s_waitcnt lgkmcnt(0)")
    a("v_readfirstlane_b32 s4, v4")
    a("s_mov_b64 exec, -1")
    a("s_cmp_eq_u32 s4, 3\ns_cbranch_scc0 %s" % lab)
    signal(a, idx_code)
    a.label(lab)

def only_w0(a, body):
    lab = a.new("w0")
    a("s_cmp_lg_u32 %s, 0\ns_cbranch_scc1 %s" % (s(S_PW), lab))
    body()
    a.label(lab)

def lanes_all(off_code, target):
    return off_code + "\nv_mov_b32 v3, %d" % target

def small_token_offsets(a, dst, rs_shift, lanefn):
    a("s_lshl_b32 s4, %s, 6\ns_lshl_b32 s5, %s, 5\ns_add_u32 s4, s4, s5" % (s(S_RT), s(S_WM)))
    a("v_and_b32 %s, 15, v0" % v(dst))
    a("v_add_u32 %s, s4, %s" % (v(dst), v(dst)))
    lanefn(dst + 1)
    a("v_lshl_add_u32 %s, %s, %d, %s" % (v(dst), v(dst), rs_shift, v(dst + 1)))
    a("v_add_u32 %s, %d, %s" % (v(dst + 1), 16 << rs_shift, v(dst)))

def small_mfmas(B):
    def f(set_, first):
        out = []
        for k2 in range(2):
            for tb in range(2):
                for ff in range(2):
                    out.append(mm(B.A(tb, ff), B.wf[set_] + k2 * 8 + ff * 4, B.xf[set_] + k2 * 8 + tb * 4, first and k2 == 0))
        return out
    return f

def only_wave0(a, body):
    lab = a.new("c0")
    a("s_cmp_lg_u32 s3, 0\ns_cbranch_scc1 %s" % lab)
    body()
    a.label(lab)
def poll_h(a):
    a("s_lshr_b32 s6, %s, 1" % s(S_RT))
    a("s_add_u32 s5, s6, 1\ns_min_u32 s5, s5, 15")
    a("s_sub_u32 s7, s6, 1\ns_max_i32 s7, s7, 0")
    a("s_bitcmp1_b32 %s, 0\ns_cselect_b32 s5, s5, s7" % s(S_RT))
    a("s_lshl_b32 %s, s6, 8\ns_lshl_b32 %s, s5, 8" % (s(S_SY + 1), s(S_SY + 2)))
    poll(a, "v_mov_b32 v2, %s\nv_mov_b32 v3, %s\nv_cmp_eq_u32 vcc, 1, v0\ns_nop 1\nv_cndmask_b32 v2, v2, v3, vcc\nv_add_u32 v2, %d, v2\nv_mov_b32 v3, 16" % (s(S_SY + 1), s(S_SY + 2), CNT_H * 256))
def poll3(a):
    a("s_add_u32 s5, %s, %d\ns_lshl_b32 %s, s5, 8" % (s(S_RT), CNT_X1, s(S_SY + 1)))
    poll(a, "v_mov_b32 v2, %s\nv_mov_b32 v3, 16" % s(S_SY + 1))
def poll4a(a):
    a("s_lshr_b32 s5, %s, 3\ns_add_u32 s5, s5, %d\ns_lshl_b32 %s, s5, 8" % (s(S_RT), CNT_O, s(S_SY + 1)))
    poll(a, "v_mov_b32 v2, %s\nv_mov_b32 v3, 16" % s(S_SY + 1))
def poll4b(a):
    a("s_lshr_b32 s5, %s, 1\ns_add_u32 s5, s5, %d\ns_lshl_b32 %s, s5, 8" % (s(S_RT), CNT_G, s(S_SY + 1)))
    poll(a, "v_mov_b32 v2, %s\nv_mov_b32 v3, 11" % s(S_SY + 1))

def c_p1(a):
    R = Regs(8)
    B = Big(R, True, True)
    vtok = R.alloc(4)
    X = R.alloc(24, 4)
    SW = R.alloc(4); SR = R.alloc(1); RD = R.alloc(16, 4)
    VP = R.alloc(2); VD = R.alloc(1)
    T = B.xf[0]
    B.setup(a, 2)
    inj1 = None
    if OPT.l2pf:
        pf_addr(a, VP)
        lst = pf_list(VP, VD, [(P_W2, D * D * 2, False), (P_WO, D * D * 2, True), (P_W3, D * F * 2, False)])
        inj1 = {OPT.pfstep + i: [x] for i, x in enumerate(lst)}
    lab = a.new("lz")
    a("s_cmp_lg_u32 s3, 0\ns_cbranch_scc1 %s" % lab)
    a("v_lshlrev_b32 v2, 2, v0\nv_add_u32 v2, 0x%x, v2\nv_mov_b32 v3, 0" % LCNT)
    set_exec(a, 0xffff)
    a("ds_write_b32 v2, v3")
    full_exec(a)
    a.label(lab)
    a("s_waitcnt lgkmcnt(0)")
    lab = a.new("gz")
    a("s_or_b32 s4, s2, s3\ns_cmp_lg_u32 s4, 0\ns_cbranch_scc1 %s" % lab)
    cnt_srd(a)
    a("v_lshlrev_b32 v2, 8, v0\nv_mov_b32 v3, 0")
    a("buffer_store_dword v3, v2, %s, 0 offen sc1" % s(SRD_D, 4))
    srd(a, SRD_C, P_DBG, 0, 256)
    a("s_waitcnt vmcnt(0)")
    a("v_mov_b32 v2, 0\nv_mov_b32 v3, 1")
    a("s_mov_b64 exec, 1")
    a("buffer_store_dword v3, v2, %s, 0 offen sc1" % s(SRD_C, 4))
    a("s_mov_b64 exec, -1")
    a.label(lab)
    srd(a, SRD_A, P_WS, WS_PQ, SZ_ACT)
    srd(a, SRD_B, P_WS, WS_KVP, 16 * 32 * KVP_ST)
    srd(a, SRD_C, P_WS, WS_XST, S * 8)
    srd(a, SRD_D, P_WS, WS_H, SZ_PAD)
    a("s_cmp_ge_u32 %s, 4\ns_cbranch_scc0 c1_sw" % s(S_CT))
    a("s_cmp_ge_u32 %s, 12\ns_cbranch_scc1 c1_sw" % s(S_CT))
    mainloop(a, 8, B.reads, lambda st, first: B.mfmas(st, first, False), 2, inject=inj1)
    mfma_drain(a)
    stats_from_gram(a, B, T, False)
    colsum_to_table(a, B, T + 12)
    a("s_waitcnt lgkmcnt(0)\ns_barrier")
    kv_epilogue(a, B, T, X)
    a("s_branch c1_done")
    a.label("c1_sw")
    mainloop(a, 8, B.reads, lambda st, first: B.mfmas(st, first, True), 2, inject=inj1)
    mfma_drain(a)
    stats_from_gram(a, B, T, True)
    colsum_to_table(a, B, T + 12)
    a("s_cmp_ge_u32 %s, 12\ns_cbranch_scc1 c1_h" % s(S_CT))
    big_token_offsets(a, vtok, rs_shift=5, lanefn=lane_pair(65536)(a))
    a("s_lshl_b32 s4, %s, 3\ns_lshl_b32 s5, %s, 2\ns_add_u32 s4, s4, s5\ns_lshl_b32 %s, s4, 16" % (s(S_CT), s(S_WN), s(sB)))
    pair_soffsets(a, sP, sB, 16)
    a("s_waitcnt lgkmcnt(0)\ns_barrier")
    q_epilogue(a, B, T, SRD_A, vtok, sP)
    a("s_branch c1_done")
    a.label("c1_h")
    a("s_mov_b32 %s, %d" % (s(sL), LDA))
    Stager.setup(a, SW, SR, vtok, rs_sgpr=sL)
    a("s_sub_u32 s4, %s, 12\ns_lshl_b32 s4, s4, 8\ns_lshl_b32 s5, %s, 7\ns_add_u32 %s, s4, s5\ns_add_u32 %s, %s, %d" % (s(S_CT), s(S_WN), s(sP), s(sP + 1), s(sP), 8 * LDA))
    a("s_waitcnt lgkmcnt(0)\ns_barrier")
    gelu_epilogue(a, B, T, True, Stager(a, SW, SR, vtok, SRD_D, sP, sP + 1, RD))
    a.label("c1_done")
    stamp(a, 5)
    consumer_done(a, 0, "s_add_u32 s4, %s, %d" % (s(S_RT), CNT_H))
    stamp(a, 6)
    return R.hi

def c_p2(a):
    tile_ids_small(a, 4)
    R = Regs(8)
    B = Small(R)
    vtok = R.alloc(2); vtk8 = R.alloc(2)
    XR = R.alloc(4, 4)
    L = R.alloc(12, 4)
    small_token_offsets(a, vtok, 10, lane_pair(32)(a))
    sF = S_EP
    a("s_lshl_b32 s4, %s, 7\ns_lshl_b32 s5, %s, 6\ns_add_u32 %s, s4, s5" % (s(S_CT), s(S_WN), s(sF)))
    a("s_lshl_b32 s4, %s, 6\ns_lshl_b32 s5, %s, 5\ns_add_u32 s4, s4, s5" % (s(S_RT), s(S_WM)))
    a("v_and_b32 %s, 15, v0" % v(vtk8))
    a("v_add_u32 %s, s4, %s" % (v(vtk8), v(vtk8)))
    a("v_lshlrev_b32 %s, 3, %s" % (v(vtk8), v(vtk8)))
    B.setup(a, 2)
    only_wave0(a, lambda: poll_h(a))
    srd(a, SRD_A, P_X, 0, SZ_ACT)
    srd(a, SRD_B, P_WS, WS_XST, S * 8)
    srd(a, SRD_C, P_WS, WS_X1, SZ_PAD)
    a("s_barrier")
    stamp(a, 7)
    for tb in range(2):
        a("buffer_load_dwordx4 %s, %s, %s, %s offen" % (v(L + 4 * tb, 4), v(vtok + tb), s(SRD_A, 4), s(sF)))
        a("buffer_load_dwordx2 %s, %s, %s, 0 offen offset:%d sc1" % (v(L + 8 + 2 * tb, 2), v(vtk8), s(SRD_B, 4), tb * 128))
    mainloop(a, 4, B.reads, small_mfmas(B), 8)
    srd(a, SRD_D, P_WS, WS_X1ST, 32 * 8 * 512)
    a("s_waitcnt vmcnt(0)")
    for tb in range(2): swap_pair(a, L + 4 * tb)
    mfma_drain(a)
    T = B.xf[0]
    for tb in range(2):
        pm = L + 8 + 2 * tb
        a("v_mul_f32 %s, %s, %s" % (v(pm), v(pm), v(pm + 1)))
        a("v_sub_f32 %s, 0, %s" % (v(pm), v(pm)))
        for f in range(2):
            A = B.A(tb, f); src = L + 4 * tb + 2 * f
            unpack_bf16(a, XR, XR + 1, src); unpack_bf16(a, XR + 2, XR + 3, src + 1)
            for i in range(2):
                a("v_pk_fma_f32 %s, %s, %s, %s op_sel:[0,1,0] op_sel_hi:[1,1,0]" % (v(XR + 2 * i, 2), v(XR + 2 * i, 2), v(pm, 2), v(pm, 2)))
            for i in range(2):
                a("v_pk_add_f32 %s, %s, %s" % (v(A + 2 * i, 2), v(A + 2 * i, 2), v(XR + 2 * i, 2)))
    vw, vs = T + 20, T + 21
    a("s_lshl_b32 s5, %s, 2" % s(S_WN))
    a("v_lshrrev_b32 %s, 5, v0\nv_add_u32 %s, s5, %s" % (v(vw), v(vw), v(vw)))
    a("v_and_b32 %s, 7, v0\nv_xor_b32 %s, %s, %s\nv_lshlrev_b32 %s, 4, %s" % (v(vs), v(vw), v(vw), v(vs), v(vw), v(vw)))
    a("v_and_b32 %s, 15, v0\nv_lshl_add_u32 %s, %s, 7, %s" % (v(vs), v(vw), v(vs), v(vw)))
    a("v_bfe_u32 %s, v0, 4, 1\nv_lshl_add_u32 %s, %s, 3, %s" % (v(vs), v(vw), v(vs), v(vw)))
    a("s_lshl_b32 s4, %s, 12\ns_add_u32 s4, s4, 0x%x" % (s(S_WM), STG))
    a("v_add_u32 %s, s4, %s" % (v(vw), v(vw)))
    a("v_xor_b32 %s, 32, %s" % (v(vw + 2), v(vw)))
    for tb in range(2):
        o = T + 4 * tb
        for f in range(2):
            A = B.A(tb, f)
            a("v_cvt_pk_bf16_f32 %s, %s, %s" % (v(o + 2 * f), v(A), v(A + 1)))
            a("v_cvt_pk_bf16_f32 %s, %s, %s" % (v(o + 2 * f + 1), v(A + 2), v(A + 3)))
            a("ds_write_b64 %s, %s offset:%d" % (v(vw + 2 * f), v(o + 2 * f, 2), tb * 2048))
    for tb in range(2):
        st = T + 8 + 2 * tb
        p, q_ = T + 12, T + 14
        A0, A1 = B.A(tb, 0), B.A(tb, 1)
        a("v_pk_add_f32 %s, %s, %s" % (v(p, 2), v(A0, 2), v(A0 + 2, 2)))
        a("v_pk_mul_f32 %s, %s, %s" % (v(q_, 2), v(A0, 2), v(A0, 2)))
        a("v_pk_add_f32 %s, %s, %s" % (v(p, 2), v(p, 2), v(A1, 2)))
        a("v_pk_fma_f32 %s, %s, %s, %s" % (v(q_, 2), v(A0 + 2, 2), v(A0 + 2, 2), v(q_, 2)))
        a("v_pk_add_f32 %s, %s, %s" % (v(p, 2), v(p, 2), v(A1 + 2, 2)))
        a("v_pk_fma_f32 %s, %s, %s, %s" % (v(q_, 2), v(A1, 2), v(A1, 2), v(q_, 2)))
        a("v_pk_fma_f32 %s, %s, %s, %s" % (v(q_, 2), v(A1 + 2, 2), v(A1 + 2, 2), v(q_, 2)))
        a("v_add_f32 %s, %s, %s" % (v(st), v(p), v(p + 1)))
        a("v_add_f32 %s, %s, %s" % (v(st + 1), v(q_), v(q_ + 1)))
        xlane_sum_q(a, st, T + 16); xlane_sum_q(a, st + 1, T + 17)
    a("s_lshl_b32 s4, %s, 9\ns_lshl_b32 s5, %s, 3\ns_add_u32 s4, s4, s5\ns_add_u32 s4, s4, 0x%x" % (s(S_WM), s(S_WN), STG + 8192))
    a("v_and_b32 %s, 15, v0\nv_lshl_add_u32 %s, %s, 4, s4" % (v(vs), v(vs), v(vs)))
    set_exec(a, 0xffff)
    for tb in range(2):
        a("ds_write_b64 %s, %s offset:%d" % (v(vs), v(T + 8 + 2 * tb, 2), tb * 256))
    full_exec(a)
    a("v_lshrrev_b32 %s, 3, v0\nv_and_b32 %s, 7, v0\nv_xor_b32 %s, %s, %s\nv_lshlrev_b32 %s, 4, %s" % (v(T), v(T + 1), v(T + 2), v(T), v(T + 1), v(T + 2), v(T + 2)))
    a("v_lshl_add_u32 %s, %s, 7, %s" % (v(T + 2), v(T), v(T + 2)))
    a("s_lshl_b32 s4, s3, 11\ns_add_u32 s4, s4, 0x%x" % STG)
    a("v_add_u32 %s, s4, %s" % (v(T + 2), v(T + 2)))
    a("s_lshl_b32 s4, %s, 6\ns_lshl_b32 s5, s3, 4\ns_add_u32 s4, s4, s5" % s(S_RT))
    a("s_mov_b32 s5, %d" % LDA)
    a("v_add_u32 %s, s4, %s\nv_mul_u32_u24 %s, s5, %s\nv_lshl_add_u32 %s, %s, 4, %s" % (v(T), v(T), v(T), v(T), v(T), v(T + 1), v(T)))
    a("s_lshl_b32 %s, %s, 7\ns_add_u32 %s, %s, %d" % (s(sF), s(S_CT), s(sF + 1), s(sF), 8 * LDA))
    a("v_lshlrev_b32 %s, 4, v0\nv_add_u32 %s, 0x%x, %s" % (v(T + 3), v(T + 3), STG + 8192, v(T + 3)))
    a("s_waitcnt lgkmcnt(0)")
    a("s_barrier")
    for i in range(2):
        a("ds_read_b128 %s, %s offset:%d" % (v(T + 4 + 4 * i, 4), v(T + 2), i * 1024))
    a("ds_read_b128 %s, %s" % (v(T + 12, 4), v(T + 3)))
    a("s_lshl_b32 s4, %s, 3\ns_add_u32 s4, s4, %s\ns_lshl_b32 s4, s4, 9" % (s(S_RT), s(S_CT)))
    a("v_lshlrev_b32 %s, 3, v0" % v(T + 3))
    a("s_waitcnt lgkmcnt(0)")
    for i in range(2):
        a("buffer_store_dwordx4 %s, %s, %s, %s offen sc1" % (v(T + 4 + 4 * i, 4), v(T), s(SRD_C, 4), s(sF + i)))
    lab = a.new("nst")
    a("s_cmp_lg_u32 s3, 0\ns_cbranch_scc1 %s" % lab)
    a("v_pk_add_f32 %s, %s, %s" % (v(T + 12, 2), v(T + 12, 2), v(T + 14, 2)))
    a("buffer_store_dwordx2 %s, %s, %s, s4 offen sc1" % (v(T + 12, 2), v(T + 3), s(SRD_D, 4)))
    a.label(lab)
    stamp(a, 11)
    consumer_done(a, 1, "s_lshr_b32 s4, %s, 1\ns_add_u32 s4, s4, %d" % (s(S_RT), CNT_X1))
    stamp(a, 12)
    return R.hi

def o_job(a):
    R = Regs(8)
    KV = R.alloc(32, 4); Z = R.alloc(16, 4); PQ = R.alloc(32, 4); OP = R.alloc(8, 4); N = R.alloc(16, 4); Dn = R.alloc(16, 4)
    vkv = R.alloc(1); vz = R.alloc(1); vpq = R.alloc(1); vl = R.alloc(1)
    poll(a, "v_and_b32 v2, 15, v0\nv_lshlrev_b32 v2, 8, v2\nv_mov_b32 v3, 16")
    srd(a, SRD_A, P_WS, WS_KVP, 16 * 32 * KVP_ST)
    srd(a, SRD_B, P_WS, WS_PQ, SZ_ACT)
    srd(a, SRD_C, P_WS, WS_O, SZ_ACT)
    a("s_and_b32 s6, %s, 3\ns_lshl_b32 s6, s6, 2\ns_add_u32 s6, s6, %s\ns_sub_u32 s6, s6, 11\ns_lshl_b32 s6, s6, 1" % (s(S_RT), s(S_CT)))
    a("s_lshl_b32 s7, s3, 7\ns_add_u32 s7, s7, s6\ns_mul_i32 %s, s7, %d" % (s(S_SY + 1), KVP_ST))
    a("v_and_b32 v2, 15, v0\nv_lshrrev_b32 v3, 4, v0")
    a("v_lshlrev_b32 %s, 6, v2" % v(vkv))
    a("v_lshl_add_u32 %s, v3, 4, %s" % (v(vkv), v(vkv)))
    a("v_bfe_u32 v4, v0, 2, 2\nv_mul_u32_u24 v4, %d, v4\nv_and_b32 v5, 3, v0\nv_lshl_add_u32 v4, v5, 4, v4\nv_and_b32 v5, 1, v3\nv_mul_u32_u24 v5, %d, v5\nv_add3_u32 %s, v4, v5, 0\nv_add_u32 %s, 1024, %s" % (32 * KVP_ST, KVP_ST, v(vz), v(vz), v(vz)))
    a("s_lshr_b32 s4, %s, 2\ns_lshl_b32 s4, s4, 9\ns_lshl_b32 s5, s3, 7\ns_add_u32 s4, s4, s5" % s(S_RT))
    a("v_add_u32 v2, s4, v2\nv_and_b32 v4, 1, v3\nv_lshl_add_u32 v2, v4, 4, v2\nv_lshlrev_b32 v2, 5, v2\nv_lshrrev_b32 v4, 1, v3\nv_lshl_add_u32 v2, v4, 4, v2")
    a("s_lshl_b32 s6, s6, 16")
    a("v_add_u32 %s, s6, v2" % v(vpq))
    for hd in range(2):
        for p in range(4):
            a("s_add_u32 s4, %s, %d" % (s(S_SY + 1), p * 32 * KVP_ST + hd * KVP_ST))
            a("buffer_load_dwordx4 %s, %s, %s, s4 offen sc1" % (v(KV + 16 * hd + 4 * p, 4), v(vkv), s(SRD_A, 4)))
    a("buffer_load_dwordx4 %s, %s, %s, %s offen sc1" % (v(Z, 4), v(vz), s(SRD_A, 4), s(S_SY + 1)))
    for hd in range(2):
        a("s_mov_b32 s4, %d" % (hd * 65536))
        for pr in range(4):
            a("buffer_load_dwordx4 %s, %s, %s, s4 offen offset:%d sc1" % (v(PQ + 16 * hd + 4 * pr, 4), v(vpq), s(SRD_B, 4), pr * 1024))
    a("s_waitcnt vmcnt(8)")
    for hd in range(2):
        for (x, y) in ((0, 2), (1, 3), (0, 1)):
            for i in range(2):
                a("v_pk_add_f32 %s, %s, %s" % (v(KV + 16 * hd + 4 * x + 2 * i, 2), v(KV + 16 * hd + 4 * x + 2 * i, 2), v(KV + 16 * hd + 4 * y + 2 * i, 2)))
    for rot in (8, 4):
        for i in range(4):
            a("v_add_f32_dpp %s, %s, %s row_ror:%d row_mask:0xf bank_mask:0xf" % (v(Z + i), v(Z + i), v(Z + i), rot))
        a("s_nop 1")
    a("s_lshl_b32 s4, s3, 12\ns_add_u32 s4, s4, 0x%x" % STG)
    a("v_lshl_add_u32 %s, v0, 4, s4" % v(vl))
    a("ds_write_b128 %s, %s" % (v(vl), v(KV, 4)))
    a("ds_write_b128 %s, %s offset:1024" % (v(vl), v(KV + 16, 4)))
    a("v_and_b32 v2, 3, v0\nv_lshlrev_b32 v2, 4, v2\nv_bfe_u32 v3, v0, 4, 1\nv_lshl_add_u32 v2, v3, 6, v2\nv_add_u32 v2, s4, v2")
    set_exec(a, 0x000f000f)
    a("ds_write_b128 v2, %s offset:2048" % v(Z, 4))
    a("s_waitcnt lgkmcnt(0)")
    a("s_mov_b64 exec, 1")
    a("v_mov_b32 v2, 0x%x\nv_mov_b32 v3, 1" % (LCNT + 4 * 4))
    a("ds_add_u32 v2, v3")
    l1, l2 = a.new("osp"), a.new("ospd")
    a("s_mov_b32 %s, 0" % s(S_SY))
    a.label(l1)
    a("ds_read_b32 v4, v2\ns_waitcnt lgkmcnt(0)\nv_readfirstlane_b32 s4, v4")
    a("s_add_u32 %s, %s, 1\ns_cmp_ge_u32 %s, %d\ns_cbranch_scc1 %s" % (s(S_SY), s(S_SY), s(S_SY), SPIN_MAX * 8, l2))
    a("s_cmp_lt_u32 s4, 4\ns_cbranch_scc1 %s" % l1)
    a.label(l2)
    a("s_mov_b64 exec, -1")
    a("v_lshlrev_b32 %s, 4, v0\nv_add_u32 %s, 0x%x, %s" % (v(vl), v(vl), STG, v(vl)))
    a("v_lshrrev_b32 v2, 4, v0\nv_lshlrev_b32 v2, 4, v2\nv_add_u32 v2, 0x%x, v2" % (STG + 2048))
    a("s_waitcnt vmcnt(0)")
    for i in range(8): swap_pair(a, PQ + 4 * i)
    for hd in range(2):
        for p in range(4):
            a("ds_read_b128 %s, %s offset:%d" % (v(KV + 4 * p, 4), v(vl), p * 4096 + hd * 1024))
            a("ds_read_b128 %s, v2 offset:%d" % (v(Z + 4 * p, 4), p * 4096 + hd * 64))
        a("s_waitcnt lgkmcnt(0)")
        for base in (KV, Z):
            for (x, y) in ((0, 2), (1, 3), (0, 1)):
                for i in range(2):
                    a("v_pk_add_f32 %s, %s, %s" % (v(base + 4 * x + 2 * i, 2), v(base + 4 * x + 2 * i, 2), v(base + 4 * y + 2 * i, 2)))
        opk, opz = OP + 4 * hd, OP + 4 * hd + 2
        a("v_cvt_pk_bf16_f32 %s, %s, %s" % (v(opk), v(KV), v(KV + 1)))
        a("v_cvt_pk_bf16_f32 %s, %s, %s" % (v(opk + 1), v(KV + 2), v(KV + 3)))
        a("v_cvt_pk_bf16_f32 %s, %s, %s" % (v(opz), v(Z), v(Z + 1)))
        a("v_cvt_pk_bf16_f32 %s, %s, %s" % (v(opz + 1), v(Z + 2), v(Z + 3)))
    for hd in range(2):
        opk, opz = OP + 4 * hd, OP + 4 * hd + 2
        for half in range(2):
            pq = PQ + 16 * hd + 8 * half
            a("s_nop 1")
            for tb in range(4):
                a("v_mfma_f32_16x16x16_bf16 %s, %s, %s, 0" % (v(N + 4 * tb, 4), v(opk, 2), v(pq + 2 * tb, 2)))
                a("v_mfma_f32_16x16x16_bf16 %s, %s, %s, 0" % (v(Dn + 4 * tb, 4), v(opz, 2), v(pq + 2 * tb, 2)))
            mfma_drain(a)
            for tb in range(4):
                a("v_add_f32 %s, %s, %s" % (v(Dn + 4 * tb), fh(1e-6), v(Dn + 4 * tb)))
            for tb in range(4):
                a("v_rcp_f32 %s, %s" % (v(Dn + 4 * tb), v(Dn + 4 * tb)))
            a("s_nop 0")
            for tb in range(4):
                for i in range(2):
                    a("v_pk_mul_f32 %s, %s, %s op_sel_hi:[1,0]" % (v(N + 4 * tb + 2 * i, 2), v(N + 4 * tb + 2 * i, 2), v(Dn + 4 * tb, 2)))
            for tb in range(4):
                a("v_cvt_pk_bf16_f32 %s, %s, %s" % (v(pq + 2 * tb), v(N + 4 * tb), v(N + 4 * tb + 1)))
                a("v_cvt_pk_bf16_f32 %s, %s, %s" % (v(pq + 2 * tb + 1), v(N + 4 * tb + 2), v(N + 4 * tb + 3)))
            a("s_nop 1")
            a("s_mov_b32 s4, %d" % (hd * 65536))
            for pr in range(2):
                swap_pair(a, pq + 4 * pr)
                a("buffer_store_dwordx4 %s, %s, %s, s4 offen offset:%d sc1" % (v(pq + 4 * pr, 4), v(vpq), s(SRD_C, 4), (2 * half + pr) * 1024))
    consumer_done(a, 3, "s_lshr_b32 s4, %s, 2\ns_add_u32 s4, s4, %d" % (s(S_RT), CNT_O))
    stamp(a, 24)
    return R.hi

def c_p3(a):
    tile_ids_big(a, "2x16", False)
    a("s_cmp_eq_u32 %s, 15\ns_cbranch_scc1 c4_start" % s(S_CT))
    a("s_cmp_lt_u32 %s, 11\ns_cbranch_scc1 c3_g" % s(S_CT))
    hio = o_job(a)
    a("s_branch c4_start")
    a.label("c3_g")
    R = Regs(8)
    B = Big(R, False, True)
    vtok = R.alloc(4)
    X = R.alloc(32, 4)
    VR = R.alloc(1)
    SW = R.alloc(4); SR = R.alloc(1)
    VP = R.alloc(2); VD = R.alloc(1)
    RD = X + 16
    T = B.xf[0]
    B.setup(a, 2)
    inj3 = None
    if OPT.l2pf:
        pf_addr(a, VP)
        lst = pf_list(VP, VD, [(P_W4, F * D * 2, False)])
        inj3 = {2 + i: [x] for i, x in enumerate(lst)}
    a("s_lshl_b32 s4, %s, 1\ns_add_u32 s4, s4, %s\ns_lshl_b32 s4, s4, 12\ns_lshl_b32 s5, %s, 8\ns_add_u32 s4, s4, s5" % (s(S_RT), s(S_WM), s(S_WN)))
    a("v_and_b32 %s, 31, v0\nv_lshlrev_b32 %s, 3, %s\nv_lshrrev_b32 v3, 5, v0\nv_lshl_add_u32 %s, v3, 11, %s\nv_add_u32 %s, s4, %s" % ((v(VR),) * 7))
    a("s_mov_b32 %s, %d" % (s(sL), LDG))
    Stager.setup(a, SW, SR, vtok, rs_sgpr=sL)
    a("s_lshl_b32 s4, %s, 8\ns_lshl_b32 s5, %s, 7\ns_add_u32 %s, s4, s5\ns_add_u32 %s, %s, %d" % (s(S_CT), s(S_WN), s(sP), s(sP + 1), s(sP), 8 * LDG))
    only_wave0(a, lambda: poll3(a))
    srd(a, SRD_A, P_WS, WS_X1ST, 32 * 8 * 512)
    srd(a, SRD_D, P_WS, WS_G, S * LDG)
    a("s_barrier")
    stamp(a, 13)
    for p in range(4):
        a("buffer_load_dwordx2 %s, %s, %s, 0 offen offset:%d sc1" % (v(X + 2 * p, 2), v(VR), s(SRD_A, 4), p * 512))
    mainloop(a, 8, B.reads, lambda st, first: B.mfmas(st, first, True), 14, inject=inj3)
    a("s_waitcnt vmcnt(0)")
    for (x, y) in ((0, 2), (1, 3), (0, 1)):
        a("v_pk_add_f32 %s, %s, %s" % (v(X + 2 * x, 2), v(X + 2 * x, 2), v(X + 2 * y, 2)))
    for i in range(2): a("v_mov_b32 %s, %s" % (v(X + 4 + i), v(X + i)))
    a("s_nop 1")
    for i in range(2): a("v_permlane32_swap_b32 %s, %s" % (v(X + 4 + i), v(X + i)))
    a("s_nop 1")
    a("v_pk_add_f32 %s, %s, %s" % (v(X, 2), v(X, 2), v(X + 4, 2)))
    a("v_mul_f32 %s, %s, %s" % (v(X), fh(1.0 / D), v(X)))
    a("v_mul_f32 %s, %s, %s" % (v(X + 1), fh(1.0 / D), v(X + 1)))
    a("v_fma_f32 %s, -%s, %s, %s" % (v(X + 1), v(X), v(X), v(X + 1)))
    a("v_add_f32 %s, %s, %s" % (v(X + 1), fh(EPS), v(X + 1)))
    a("v_rsq_f32 %s, %s" % (v(X + 1), v(X + 1)))
    a("s_lshl_b32 s4, %s, 8\ns_lshl_b32 s5, %s, 7\ns_add_u32 s4, s4, s5\ns_add_u32 s4, s4, 0x%x" % (s(S_WM), s(S_WN), TAB_M))
    a("v_and_b32 v2, 31, v0\nv_lshl_add_u32 v2, v2, 2, s4")
    a("ds_write_b32 v2, %s" % v(X))
    a("ds_write_b32 v2, %s offset:512" % v(X + 1))
    colsum_to_table(a, B, T + 12)
    a("s_waitcnt lgkmcnt(0)\ns_barrier")
    gelu_epilogue(a, B, T, False, Stager(a, SW, SR, vtok, SRD_D, sP, sP + 1, RD))
    stamp(a, 17)
    consumer_done(a, 2, "s_add_u32 s4, %s, %d" % (s(S_RT), CNT_G))
    stamp(a, 18)
    return max(R.hi, hio)

def c_p4(a):
    a.label("c4_start")
    tile_ids_small(a, 11)
    R = Regs(8)
    B = Small(R)
    vtok = R.alloc(2); VRD = R.alloc(2); L = R.alloc(16, 4); Xr = R.alloc(8, 4)
    small_token_offsets(a, vtok, 10, lane_pair(32)(a))
    sF = S_EP
    a("s_lshl_b32 s4, %s, 7\ns_lshl_b32 s5, %s, 6\ns_add_u32 %s, s4, s5" % (s(S_CT), s(S_WN), s(sF)))
    srd(a, SRD_C, P_OUT, 0, SZ_ACT)
    a("s_lshl_b32 s5, %s, 2" % s(S_WN))
    a("v_lshrrev_b32 v2, 5, v0\nv_add_u32 v2, s5, v2\nv_and_b32 v3, 7, v0\nv_xor_b32 v2, v2, v3\nv_lshlrev_b32 v2, 4, v2")
    a("v_and_b32 v3, 15, v0\nv_lshl_add_u32 v2, v3, 7, v2\nv_bfe_u32 v3, v0, 4, 1\nv_lshl_add_u32 v2, v3, 3, v2")
    a("s_lshl_b32 s4, %s, 12\ns_add_u32 s4, s4, 0x%x" % (s(S_WM), STG))
    a("v_add_u32 %s, s4, v2\nv_xor_b32 %s, 32, %s" % (v(VRD), v(VRD + 1), v(VRD)))
    B.setup(a, 2)
    only_wave0(a, lambda: poll4a(a))
    a("s_barrier")
    stamp(a, 19)
    mainloop(a, 15, B.reads, small_mfmas(B), 20, last_barrier=False)
    T = B.xf[0]
    for src in range(2):
        for tb in range(2):
            for f in range(2):
                a("ds_read_b64 %s, %s offset:%d" % (v(L + 8 * src + (tb * 2 + f) * 2, 2), v(VRD + f), src * 8192 + tb * 2048))
    mfma_drain(a)
    a("s_waitcnt lgkmcnt(0)")
    for tb in range(2):
        for f in range(2):
            A = B.A(tb, f); i = (tb * 2 + f) * 2
            unpack_bf16(a, Xr, Xr + 1, L + i); unpack_bf16(a, Xr + 2, Xr + 3, L + i + 1)
            unpack_bf16(a, Xr + 4, Xr + 5, L + 8 + i); unpack_bf16(a, Xr + 6, Xr + 7, L + 8 + i + 1)
            for k in range(2):
                a("v_pk_add_f32 %s, %s, %s" % (v(Xr + 2 * k, 2), v(Xr + 2 * k, 2), v(Xr + 4 + 2 * k, 2)))
            for k in range(2):
                a("v_pk_add_f32 %s, %s, %s" % (v(A + 2 * k, 2), v(A + 2 * k, 2), v(Xr + 2 * k, 2)))
    for tb in range(2):
        o = T + 4 * tb
        for f in range(2):
            A = B.A(tb, f)
            a("v_cvt_pk_bf16_f32 %s, %s, %s" % (v(o + 2 * f), v(A), v(A + 1)))
            a("v_cvt_pk_bf16_f32 %s, %s, %s" % (v(o + 2 * f + 1), v(A + 2), v(A + 3)))
    a("s_nop 1")
    for tb in range(2):
        swap_pair(a, T + 4 * tb)
        a("buffer_store_dwordx4 %s, %s, %s, %s offen" % (v(T + 4 * tb, 4), v(vtok + tb), s(SRD_C, 4), s(sF)))
    stamp(a, 23)
    if getattr(OPT, "dbgtime", False):
        lab = a.new("dbgt")
        a("s_cmp_lg_u32 s3, 0\ns_cbranch_scc1 %s" % lab)
        a("s_waitcnt vmcnt(0)\ns_memrealtime s[4:5]\ns_memtime s[6:7]\ns_waitcnt lgkmcnt(0)")
        a("s_sub_u32 s4, s4, s94\ns_sub_u32 s6, s6, s96")
        srd(a, SRD_A, P_DBG, 0, 256)
        a("s_and_b32 s5, s2, 3\ns_lshl_b32 s5, s5, 3\ns_add_u32 s5, s5, 16")
        a("v_mov_b32 v2, s5\nv_mov_b32 v4, s4\nv_mov_b32 v5, s6\ns_mov_b64 exec, 1")
        a("buffer_store_dwordx2 v[4:5], v2, %s, 0 offen" % s(SRD_A, 4))
        a.label(lab)
    if OPT.prof: a("s_waitcnt vmcnt(0)")
    for _ in range(getattr(OPT, "xsleep", 0)): a("s_sleep 100")
    endk(a)
    return R.hi

def std_x(a, nst, rot):
    def f(st):
        if rot:
            stage_index(a, st, nst)
            a("s_mul_i32 %s, %s, %s" % (s(S_XO), s(S_G), s(s_xs)))
        else:
            a("s_mul_i32 %s, %s, %d" % (s(S_XO), s(s_xs), st))
        return [VX + j for j in range(4)], s(S_XO)
    return f
def std_w(a, nst, rot):
    def f(st):
        if rot: a("s_mul_i32 %s, %s, %s" % (s(S_WO), s(S_G), s(s_ws)))
        else:   a("s_mul_i32 %s, %s, %d" % (s(S_WO), s(s_ws), st))
        return [VW + j for j in range(4)], s(S_WO)
    return f

def w4_setup(a):
    a("s_lshr_b32 s4, s2, 3\ns_lshr_b32 s4, s4, 2\ns_lshl_b32 %s, s4, 7" % s(s_colb))
    small_addr_w(a, VW, 2, 1024, s_colb)
    srd(a, SRD_W, P_W4, 0, F * D * 2)
def w4_prep(a):
    def f(st):
        for j in range(4): a("v_add_u32 %s, 0x%x, %s" % (v(VT + j), st * 131072, v(VW + j)))
        return [VT + j for j in range(4)], "0"
    return f

def p_all(a):
    P = Prod(a)
    a("s_sub_u32 %s, s3, 4" % s(S_PW))
    a("s_lshl_b32 %s, %s, 12" % (s(S_M0B), s(S_PW)))
    a("s_lshl_b32 %s, %s, 7" % (s(s_row0), s(S_RT)))
    a("s_mov_b32 %s, 1024\ns_mov_b32 %s, 32\ns_mov_b32 %s, 128" % (s(s_rs), s(s_ca), s(s_xs)))
    a("s_mov_b32 %s, 3072\ns_mov_b32 %s, 64\ns_mov_b32 %s, 32\ns_lshl_b32 %s, %s, 8" % (s(s_ldw), s(s_A), s(s_B), s(s_colb), s(S_CT)))
    l1, l2, l3 = a.new("p1k"), a.new("p1g"), a.new("p1h")
    a("s_cmp_lt_u32 %s, 4\ns_cbranch_scc1 %s" % (s(S_CT), l2))
    a("s_cmp_lt_u32 %s, 12\ns_cbranch_scc1 %s" % (s(S_CT), l1))
    a("s_mov_b32 %s, 1024\ns_sub_u32 %s, %s, 12\ns_lshl_b32 %s, %s, 8" % (s(s_ldw), s(s_colb), s(S_CT), s(s_colb), s(s_colb)))
    a("s_branch %s" % l2)
    a.label(l1)
    a("s_mov_b32 %s, 32\ns_mov_b32 %s, 1024\ns_sub_u32 %s, %s, 4\ns_lshl_b32 %s, %s, 7\ns_add_u32 %s, %s, 1024" % (s(s_A), s(s_B), s(s_colb), s(S_CT), s(s_colb), s(s_colb), s(s_colb), s(s_colb)))
    a.label(l2)
    big_addr_x(a, VX, 2, s_row0, s_rs, s_ca)
    big_addr_w(a, VW, 2, s_ldw, s_colb, s_A, s_B)
    a("s_lshl_b32 %s, %s, 6" % (s(s_ws), s(s_ldw)))
    a("s_waitcnt lgkmcnt(0)")
    srd(a, SRD_X, P_X, 0, SZ_ACT)
    srd(a, SRD_W, P_WQKV, 0, D * 3 * D * 2)
    a("s_cmp_lt_u32 %s, 12\ns_cbranch_scc1 %s" % (s(S_CT), l3))
    srd(a, SRD_W, P_W1, 0, D * D * 2)
    a.label(l3)
    stamp(a, 2)
    VFLAG = 44
    def hook1(ev, st):
        if ev == "issued" and st == 7:
            srd(a, SRD_A, P_DBG, 0, 256)
            a("v_mov_b32 v2, 0")
            a("buffer_load_dword %s, v2, %s, 0 offen sc1" % (v(VFLAG), s(SRD_A, 4)))
            P.add("flag", 1)
            if OPT.prefetch:
                srd(a, SRD_A, P_W2, 0, D * D * 2)
                srd(a, SRD_B, P_WO, 0, D * D * 2)
                srd(a, SRD_C, P_W3, 0, D * F * 2)
                srd(a, SRD_D, P_W4, 0, F * D * 2)
                a("s_lshl_b32 s4, s2, 2\ns_add_u32 s4, s4, %s\ns_lshl_b32 s4, s4, 10" % s(S_PW))
                a("v_lshl_add_u32 v16, v0, 4, s4")
                a("v_add_u32 v17, 0x%x, v16" % (1024 * 1024))
                a("v_add_u32 v18, 0x%x, v16" % ((-512 * 1024) & 0xffffffff))
                for (d, adr, r) in ((20, 16, SRD_A), (24, 18, SRD_B), (28, 16, SRD_C), (32, 17, SRD_C), (36, 16, SRD_D), (40, 17, SRD_D)):
                    a("buffer_load_dwordx4 %s, %s, %s, 0 offen" % (v(d, 4), v(adr), s(r, 4)))
                P.add("pf", 6)
    producer_phase(P, 8, std_x(a, 8, OPT.rot1), std_w(a, 8, OPT.rot1), 0, OPT.depth, 3, hook=hook1)
    a("s_barrier")
    P.wait(["flag"])
    lab = a.new("ini")
    a("v_readfirstlane_b32 s4, %s\ns_cmp_lg_u32 s4, 0\ns_cbranch_scc1 %s" % (v(VFLAG), lab))
    poll(a, "v_mov_b32 v2, 0\nv_mov_b32 v3, 1", srd_code=lambda: srd(a, SRD_D, P_DBG, 0, 256))
    a.label(lab)
    a("s_barrier")
    a("s_mov_b32 %s, %s" % (s(S_T0 + 8), s(S_CT)))
    tile_ids_small(a, 4)
    a("s_lshl_b32 %s, %s, 7" % (s(s_colb), s(S_CT)))
    small_addr_w(a, VW, 2, 1024, s_colb)
    srd(a, SRD_W, P_W2, 0, D * D * 2)
    for st in range(4):
        a("s_mov_b32 %s, %d" % (s(S_WO), st * 131072))
        P.part(st, "w", [VW + j for j in range(4)], s(S_WO), SRD_W)
    a("s_lshl_b32 %s, %s, 6" % (s(s_row0), s(S_RT)))
    small_addr_x(a, VX, 2, s_row0, LDA)
    srd(a, SRD_X, P_WS, WS_H, SZ_PAD)
    lab = a.new("nok1")
    a("s_cmp_lt_u32 %s, 4\ns_cbranch_scc1 %s\ns_cmp_ge_u32 %s, 12\ns_cbranch_scc1 %s" % (s(S_T0 + 8), lab, s(S_T0 + 8), lab))
    a("s_barrier")
    a.label(lab)
    def pf3():
        a("s_lshr_b32 s4, s2, 3\ns_lshl_b32 s4, s4, 2\ns_add_u32 s4, s4, %s\ns_sub_u32 s5, 127, s4\ns_lshl_b32 s4, s4, 13\ns_lshl_b32 s5, s5, 13" % s(S_PW))
        a("v_lshl_add_u32 v40, v0, 7, s4\nv_lshl_add_u32 v41, v0, 7, s5")
        srd(a, SRD_A, P_W3, 0, 256 * F * 2)
        srd(a, SRD_B, P_WO, 0, 256 * D * 2)
        a("buffer_load_dword v42, v40, %s, 0 offen" % s(SRD_A, 4))
        a("buffer_load_dword v43, v41, %s, 0 offen" % s(SRD_B, 4))
        P.add("pf", 2)
    if OPT.pf3 == "p1tail": pf3()
    stamp(a, 5)
    a("s_barrier")
    stamp(a, 7)
    pos = [-LDA, LDA + 256, -2 * LDA + 512, 2 * LDA + 768]
    def x2(st):
        for j in range(4): a("v_add_u32 %s, 0x%x, %s" % (v(VT + j), pos[st] & 0xffffffff, v(VX + j)))
        return [VT + j for j in range(4)], "0"
    def hook2(ev, st):
        if ev == "issued" and st == 3 and OPT.pf3 == "d2": pf3()
    producer_phase(P, 4, x2, None, 4, 4, 8, xsc=SC1, hook=hook2)
    a("s_barrier")
    a("s_barrier")
    stamp(a, 10)
    def wo_prefetch():
        a("s_lshr_b32 s4, s2, 3\ns_lshr_b32 s4, s4, 2\ns_lshl_b32 %s, s4, 7" % s(s_colb))
        small_addr_w(a, VW, 2, 1024, s_colb)
        srd(a, SRD_W, P_WO, 0, D * D * 2)
        for st in range(4):
            a("s_mov_b32 %s, %d" % (s(S_WO), st * 131072))
            P.part(st, "w", [VW + j for j in range(4)], s(S_WO), SRD_W)
    tile_ids_big(a, "2x16", False)
    lskip = a.new("p3skip")
    a("s_cmp_ge_u32 %s, 11\ns_cbranch_scc1 %s" % (s(S_CT), lskip))
    a("s_lshl_b32 %s, %s, 7" % (s(s_row0), s(S_RT)))
    a("s_mov_b32 %s, 64\ns_mov_b32 %s, 32" % (s(s_A), s(s_B)))
    a("s_mov_b32 %s, %d\ns_mov_b32 %s, 32\ns_mov_b32 %s, %d\ns_lshl_b32 %s, %s, 8\ns_mov_b32 %s, 128" % (s(s_rs), LDA, s(s_ca), s(s_ldw), F * 2, s(s_colb), s(S_CT), s(s_xs)))
    srd(a, SRD_W, P_W3, 0, D * F * 2)
    srd(a, SRD_X, P_WS, WS_X1, SZ_PAD)
    big_addr_w(a, VW, 2, s_ldw, s_colb, s_A, s_B)
    lm = a.new("p3m")
    a("s_cmp_lg_u32 %s, 10\ns_cbranch_scc1 %s" % (s(S_CT), lm))
    a("v_lshrrev_b32 v2, 4, v0\nv_bfe_u32 v3, v0, 1, 3\nv_xor_b32 v2, v2, v3\nv_xor_b32 v3, 4, v2\nv_mov_b32 v4, 0x%x" % OOB)
    a("v_cmp_le_u32 vcc, 6, v2\ns_nop 1")
    a("v_cndmask_b32 %s, %s, v4, vcc\nv_cndmask_b32 %s, %s, v4, vcc" % (v(VW), v(VW), v(VW + 1), v(VW + 1)))
    a("v_cmp_le_u32 vcc, 6, v3\ns_nop 1")
    a("v_cndmask_b32 %s, %s, v4, vcc\nv_cndmask_b32 %s, %s, v4, vcc" % (v(VW + 2), v(VW + 2), v(VW + 3), v(VW + 3)))
    a.label(lm)
    a("s_lshl_b32 %s, %s, 6" % (s(s_ws), s(s_ldw)))
    for st in range(4):
        r, o = std_w(a, 8, False)(st)
        P.part(st, "w", r, o, SRD_W)
    big_addr_x(a, VX, 2, s_row0, s_rs, s_ca)
    a("s_barrier")
    stamp(a, 13)
    producer_phase(P, 8, std_x(a, 8, False), std_w(a, 8, False), 4, 4, 14, xsc=SC1)
    a("s_barrier")
    a("s_barrier")
    a.label(lskip)
    P.ops = []
    wo_prefetch()
    tile_ids_small(a, 11)
    a("s_lshl_b32 %s, %s, 6" % (s(s_row0), s(S_RT)))
    VX2, VRS = 20, 24
    small_addr_x2(a, VX, 2, s_row0, 32, 65536)
    small_addr_x(a, VX2, 2, s_row0, LDG)
    srd(a, SRD_X, P_WS, WS_O, SZ_ACT)
    srd(a, SRD_A, P_WS, WS_G, S * LDG)
    srd(a, SRD_B, P_W4, 0, F * D * 2)
    a("v_lshrrev_b32 v2, 3, v0\nv_and_b32 v3, 7, v0\nv_xor_b32 v3, v3, v2\nv_lshlrev_b32 v3, 4, v3")
    a("s_lshl_b32 s4, %s, 4\ns_add_u32 s4, s4, %s\nv_add_u32 v2, s4, v2" % (s(S_PW), s(s_row0)))
    a("s_lshl_b32 s5, %s, 7\nv_add_u32 v3, s5, v3" % s(S_CT))
    a("v_lshl_add_u32 %s, v2, 10, v3\nv_add_u32 %s, 8192, %s" % (v(VRS), v(VRS + 1), v(VRS)))
    a("s_mov_b32 s5, %d\nv_mad_u32_u24 %s, v2, s5, v3\nv_add_u32 %s, %d, %s" % (LDA, v(VRS + 2), v(VRS + 3), 8 * LDA, v(VRS + 2)))
    stamp(a, 18)
    a("s_barrier")
    stamp(a, 19)
    def xpart(st):
        if st < 4:
            a("s_mov_b32 %s, %d" % (s(S_XO), st * 8 * 65536))
            P.part(st, "x", [VX + j for j in range(4)], s(S_XO), SRD_X, SC1)
        else:
            a("s_mov_b32 %s, %d" % (s(S_XO), (st - 4) * 256))
            P.part(st, "x", [VX2 + j for j in range(4)], s(S_XO), SRD_A, SC1)
    def wpart(st):
        for j in range(4): a("v_add_u32 %s, 0x%x, %s" % (v(VT + j), (st - 4) * 131072, v(VW + j)))
        P.part(st, "w", [VT + j for j in range(4)], "0", SRD_B)
    for st in range(4): xpart(st)
    NS4 = 15
    for st in range(NS4):
        P.wait([("x", st), ("w", st)])
        a("s_barrier")
        if st == 0: stamp(a, 20)
        if st == NS4 - 1: stamp(a, 21)
        if 1 <= st <= 3:
            wpart(st + 3)
        if st == 3:
            poll4b(a)
            stamp(a, 22)
            P.ops = []
            for k in (4, 5, 6): xpart(k)
            srd(a, SRD_C, P_X, 0, SZ_ACT)
            srd(a, SRD_D, P_WS, WS_X1, SZ_PAD)
            for src, sr, sc in ((0, SRD_C, ""), (1, SRD_D, SC1)):
                for i in range(2):
                    a("s_lshl_b32 s4, %s, 11\ns_add_u32 m0, s4, 0x%x" % (s(S_PW), STG + src * 8192 + i * 1024))
                    a("s_nop 0")
                    a("buffer_load_dwordx4 %s, %s, 0 offen%s lds" % (v(VRS + 2 * src + i), s(sr, 4), sc))
            P.add("res", 4)
        if st >= 4 and st + 3 < NS4:
            xpart(st + 3); wpart(st + 3)
    endk(a)

def generate():
    a = Asm()
    head = ["; x + linear-attention block + mixer/shift MLP for gfx950: one persistent launch, four GEMM phases.",
            "; Generated by my own generator script.",
            "; @launch grid=(256,1,1) block=(512,1,1) lds=%d" % LDS_ALL,
            '.amdgcn_target "amdgcn-amd-amdhsa--gfx950"\n.text']
    kernel_head(a, KNAME, 256)
    a("s_load_dwordx16 s[36:51], s[0:1], 0")
    a("s_load_dwordx4 s[52:55], s[0:1], 64")
    a("s_load_dwordx2 s[56:57], s[0:1], 80")
    wave_id(a)
    if OPT.prof: a("v_mov_b32 %s, 0" % v(V_ST))
    stamp(a, 0, True); stamp(a, 1)
    if getattr(OPT, "dbgtime", False):
        a("s_memrealtime s[94:95]\ns_memtime s[96:97]")
    tile_ids_big(a, "4x8", OPT.rot1)
    a("s_cmp_ge_u32 s3, 4\ns_cbranch_scc1 prod")
    wave_mn(a)
    hi = [c_p1(a), c_p2(a), c_p3(a), c_p4(a)]
    a.label("prod")
    p_all(a)
    kernel_tail(a, KNAME)
    nv = 256 if OPT.prof else (max(hi + [120]) + 7) // 8 * 8
    return "\n".join(head) + "\n" + a.text() + '.section .rodata,"a"\n' + descriptor(KNAME, nv)

if __name__ == "__main__":
    import argparse
    ap = argparse.ArgumentParser()
    ap.add_argument("out"); ap.add_argument("--prof", action="store_true")
    ap.add_argument("--nopf", action="store_true"); ap.add_argument("--norot1", action="store_true")
    ap.add_argument("--depth", type=int, default=2)
    ap.add_argument("--dbgtime", action="store_true"); ap.add_argument("--nol2pf", action="store_true"); ap.add_argument("--pfstep", type=int, default=5); ap.add_argument("--pf3", default="none"); ap.add_argument("--l2pf", action="store_true")
    ap.add_argument("--xsleep", type=int, default=0)
    x = ap.parse_args()
    OPT.xsleep = x.xsleep
    OPT.dbgtime = x.dbgtime; OPT.l2pf = x.l2pf; OPT.pfstep = x.pfstep; OPT.pf3 = x.pf3
    OPT.prof = x.prof; OPT.rot = False; OPT.rot1 = not x.norot1; OPT.prefetch = not x.nopf; OPT.depth = x.depth
    open(x.out, "w").write(generate())
    print("wrote", x.out)
```
